```python
import torch

def _softmax(x, axis=-1):
    return torch.softmax(x, dim=axis)
def _gelu(x):
    return torch.nn.functional.gelu(x, approximate="tanh")
def _silu(x):
    return torch.nn.functional.silu(x)
def _sigmoid(x):
    return torch.sigmoid(x)
def _layernorm(x, axis=-1, eps=1e-5):
    m = x.mean(dim=axis, keepdim=True)
    v = x.var(dim=axis, keepdim=True, unbiased=False)
    return (x - m) / torch.sqrt(v + eps)
def _scatter_add(tgt, idx, src, axis=0):
    return tgt.clone().index_add_(axis, idx, src)
def _segment_sum(src, seg, n):
    out = torch.zeros((n,) + src.shape[1:], dtype=src.dtype)
    return out.index_add_(0, seg, src)
def _pad(x, pw):
    flat = tuple(v for pair in reversed(pw) for v in pair)
    return torch.nn.functional.pad(x, flat)

kernel_name = 'standalone__weight_only_int_omniquant__prompt'

def setup_inputs():

    _w = (lambda a: (lambda t: t.to(torch.bfloat16) if t.is_floating_point() else t)(torch.as_tensor(a)))
    B, S, D, F = 1, 2048, 1024, 3584
    bits = 3
    G = 64 if 64 > 0 else D
    D = (D // G) * G
    ng = D // G
    qmax = (1 << bits) - 1
    qw = torch.randint(0, qmax + 1, (D, F)).to(torch.int32)
    scales = (torch.abs((lambda *s: torch.randn(*s, dtype=torch.bfloat16) * 0.05)(ng, F)) * 0.05 + 0.01).to(float)
    zeros = torch.randint(0, qmax + 1, (ng, F)).to(float)
    act_scale = (torch.abs((lambda *s: torch.randn(*s, dtype=torch.bfloat16) * 0.05)(D)) * 0.5 + 0.5).to(float)
    return {
        "x": _w((lambda *s: torch.randn(*s, dtype=torch.bfloat16) * 0.05)(B, S, D)),
        "qw": _w(qw),
        "scales": _w(scales),
        "zeros": _w(zeros),
        "act_scale": _w(act_scale),
    }

def reference(x, qw, scales, zeros, act_scale):
    B, S, D = x.shape
    ng, F = scales.shape
    G = D // ng
    s = (lambda x, n, axis: torch.repeat_interleave(x, n, dim=axis))(scales, G, axis=0)
    z = (lambda x, n, axis: torch.repeat_interleave(x, n, dim=axis))(zeros, G, axis=0)
    w = ((lambda x, dt: x.to(dt))(qw, x.dtype) - z) * s
    xs = x * (lambda x, dt: x.to(dt))(act_scale, x.dtype)
    return torch.einsum("bsd,df->bsf", xs, w)
```

```python
import sys, argparse

KNAME = "standalone__weight_only_int_omniquant__prompt_kernel"
HEADER = """; Kernarg layout for this problem (64 bytes, ptrs only, base s[0:1]):
"""

class Q:
    def __init__(self, maxn):
        self.ops = []
        self.maxn = maxn
    def issue(self, tag):
        self.ops.append(tag)
    def need(self, tags):
        last = -1
        for i, t in enumerate(self.ops):
            if t in tags:
                last = i
        if last < 0:
            return None
        n = len(self.ops) - 1 - last
        return min(n, self.maxn)

class Gen:
    def __init__(self, opt):
        self.L = []
        self.opt = opt
    def e(self, s):
        self.L.append("    " + s)
    def lab(self, s):
        self.L.append(s + ":")
    def c(self, s):
        self.L.append("    ; " + s)

NT = 16
XRING = 0
WRING = 131072

def gen(opt):
    g = Gen(opt)
    e = g.e
    NWG = 224
    e(f"s_cmp_ge_u32 s2, {NWG}")
    e("s_cbranch_scc1 L_end")
    if opt.stamp:
        e("s_memrealtime s[60:61]")
    e("s_load_dwordx4 s[4:7], s[0:1], 0")
    e("s_load_dwordx4 s[8:11], s[0:1], 16")
    e("s_load_dwordx4 s[12:15], s[0:1], 32")
    if opt.stamp:
        e("s_load_dwordx2 s[58:59], s[0:1], 56")
    e("v_lshrrev_b32 v1, 6, v0")
    e("s_and_b32 s16, s2, 7")
    e("s_lshr_b32 s17, s2, 3")
    e("v_readfirstlane_b32 s18, v1")
    if opt.map == 0:
        e("s_and_b32 s19, s16, 1")
        e("s_lshl_b32 s19, s19, 2")
        e("s_and_b32 s20, s17, 3")
        e("s_add_u32 s19, s19, s20")
        e("s_lshr_b32 s20, s16, 1")
        e("s_mul_i32 s20, s20, 7")
        e("s_lshr_b32 s21, s17, 2")
        e("s_add_u32 s20, s20, s21")
    else:
        e("s_mov_b32 s19, s16")
        e("s_mov_b32 s20, s17")
    e("v_and_b32 v7, 63, v0")
    e("s_cmp_ge_u32 s18, 4")
    e("s_cbranch_scc1 L_producer")

    g.c("consumer")
    e("s_setprio 3")
    e("s_waitcnt lgkmcnt(0)")
    e("s_and_b32 s21, s18, 1")
    e("s_lshr_b32 s22, s18, 1")
    e("v_and_b32 v10, 31, v7")
    e("v_lshrrev_b32 v11, 5, v7")
    e("v_lshrrev_b32 v12, 3, v10")
    e("v_lshrrev_b32 v13, 2, v10")
    e("v_lshrrev_b32 v14, 1, v10")
    e("v_xor_b32 v13, v13, v14")
    e("v_and_b32 v13, 1, v13")
    e("v_lshl_or_b32 v12, v13, 2, v12")
    e("v_xor_b32 v12, v12, v11")
    e("v_lshlrev_b32 v12, 4, v12")
    e("v_lshl_add_u32 v12, v10, 7, v12")
    e("s_lshl_b32 s23, s21, 14")
    e("s_lshl_b32 s24, s22, 13")
    e(f"s_add_u32 s24, s24, {WRING}")
    for ks in range(4):
        e(f"v_xor_b32 v13, {ks*32}, v12")
        e(f"v_add_u32 v{2+ks}, s23, v13")
        e(f"v_add_u32 v{6+ks+ (0)}, s24, v13" if False else f"v_add_u32 v{64+ks}, s24, v13")
    XA = [2, 3, 4, 5]
    WA = [64, 65, 66, 67]
    for r in range(128, 256):
        e(f"v_mov_b32 v{r}, 0")
    F = [dict(x=[16, 20, 24, 28], w=[32, 36]), dict(x=[40, 44, 48, 52], w=[56, 60])]
    def acc(tn, tm):
        b = 128 + (tn * 4 + tm) * 16
        return f"v[{b}:{b+15}]"
    lq = Q(15)
    def rd(buf, kind, idx, t, ks):
        if kind == "x":
            r = F[buf]["x"][idx]
            off = idx * 4096 + (t & 1) * 32768
            e(f"ds_read_b128 v[{r}:{r+3}], v{XA[ks]} offset:{off}")
        else:
            r = F[buf]["w"][idx]
            off = idx * 4096 + (t & 1) * 16384
            e(f"ds_read_b128 v[{r}:{r+3}], v{WA[ks]} offset:{off}")
        lq.issue((t, ks, kind, idx))
    order = [("w", 0), ("x", 0), ("x", 1), ("x", 2), ("x", 3), ("w", 1)]
    lastw = [None]
    def lwait(tags):
        n = lq.need(tags)
        if n is None:
            return
        done_upto = len(lq.ops) - n
        if lastw[0] is not None and lastw[0] >= done_upto:
            return
        lastw[0] = done_upto
        e(f"s_waitcnt lgkmcnt({n})")
    def phase(mf, rdspec):
        reads = list(order) if rdspec else []
        mfs = [(tn, tm) for tn in range(2) for tm in range(4)] if mf else []
        if not mf:
            for kind, idx in reads:
                rd(rdspec[2], kind, idx, rdspec[0], rdspec[1])
            return
        ri = 0
        for mi, (tn, tm) in enumerate(mfs):
            for _ in range(opt.rpm):
                if ri < len(reads):
                    kind, idx = reads[ri]; ri += 1
                    rd(rdspec[2], kind, idx, rdspec[0], rdspec[1])
            t, ks, buf = mf
            lwait({(t, ks, "w", tn), (t, ks, "x", tm)})
            if not opt.nomfma:
                xr = F[buf]["x"][tm]; wr = F[buf]["w"][tn]
                e(f"v_mfma_f32_32x32x16_bf16 {acc(tn,tm)}, v[{wr}:{wr+3}], v[{xr}:{xr+3}], {acc(tn,tm)}")
    for t in range(NT):
        if t > 0:
            n = 0
            e("s_waitcnt lgkmcnt(0)")
            lastw[0] = len(lq.ops)
        e("s_barrier")
        if opt.stamp and t == 0:
            e("s_memrealtime s[62:63]")
            e("s_waitcnt lgkmcnt(0)")
        if t > 0 and t % 2 == 0:
            for ks in range(4):
                e(f"v_xor_b32 v{XA[ks]}, 0x10000, v{XA[ks]}")
        phase((t-1, 3, 1) if t > 0 else None, (t, 0, 0))
        phase((t, 0, 0), (t, 1, 1))
        phase((t, 1, 1), (t, 2, 0))
        phase((t, 2, 0), (t, 3, 1))
    phase((NT-1, 3, 1), None)
    if opt.stamp:
        e("s_memrealtime s[64:65]")
    g.c("epilogue")
    e("s_lshl_b32 s25, s19, 8")
    e("s_lshl_b32 s26, s21, 7")
    e("s_add_u32 s25, s25, s26")
    e("s_mul_i32 s25, s25, 7168")
    e("s_lshl_b32 s26, s20, 8")
    e("s_lshl_b32 s27, s22, 7")
    e("s_add_u32 s26, s26, s27")
    e("s_add_u32 s25, s25, s26")
    e("s_add_u32 s40, s14, s25")
    e("s_addc_u32 s41, s15, 0")
    e("s_and_b32 s41, s41, 0xffff")
    e("s_sub_u32 s42, 14680064, s25")
    e("s_mov_b32 s43, 0x20000")
    e("v_and_b32 v12, 7, v10")
    e("v_lshlrev_b32 v13, 1, v11")
    e("v_xor_b32 v12, v12, v13")
    e("v_lshlrev_b32 v12, 4, v12")
    e("v_lshl_add_u32 v12, v10, 7, v12")
    e("s_lshl_b32 s26, s18, 14")
    e("v_add_u32 v12, s26, v12")
    for tn in range(2):
        for q in range(2):
            e(f"v_xor_b32 v{68+tn*2+q}, {(4*tn+q)<<4}, v12")
    e("v_lshrrev_b32 v13, 3, v7")
    e("v_and_b32 v14, 7, v7")
    e("v_xor_b32 v15, v14, v13")
    e("v_and_b32 v15, 7, v15")
    e("v_lshlrev_b32 v15, 4, v15")
    e("v_lshl_add_u32 v15, v13, 7, v15")
    e("v_add_u32 v72, s26, v15")
    e("v_mul_u32_u24 v73, 7168, v13")
    e("v_lshl_add_u32 v73, v14, 4, v73")
    e("s_nop 7")
    e("s_nop 7")
    T = 80
    k = 0
    for tm in range(4):
        for tn in range(2):
            b = 128 + (tn * 4 + tm) * 16
            tb = T + (k % 4) * 8
            for d in range(8):
                e(f"v_cvt_pk_bf16_f32 v{tb+d}, v{b+2*d}, v{b+2*d+1}")
            for q in range(2):
                e(f"ds_write_b128 v{68+tn*2+q}, v[{tb+4*q}:{tb+4*q+3}] offset:{tm*4096}")
            k += 1
    e("s_waitcnt lgkmcnt(0)")
    e("s_mov_b32 s27, 0")
    R = 16
    for it in range(16):
        r = R + (it % 8) * 4
        if it == 8:
            pass
        e(f"ds_read_b128 v[{r}:{r+3}], v72 offset:{it*1024}")
        if it >= 7:
            j = it - 7
            rr = R + (j % 8) * 4
            e(f"s_waitcnt lgkmcnt({min(7, 15-j) if False else (it - j)})")
            e(f"buffer_store_dwordx4 v[{rr}:{rr+3}], v73, s[40:43], s27 offen{opt.stmod}")
            e(f"s_add_u32 s27, s27, 57344")
    for j in range(9, 16):
        rr = R + (j % 8) * 4
        e(f"s_waitcnt lgkmcnt({15-j})")
        e(f"buffer_store_dwordx4 v[{rr}:{rr+3}], v73, s[40:43], s27 offen{opt.stmod}")
        e(f"s_add_u32 s27, s27, 57344")
    if opt.stamp:
        e("s_waitcnt vmcnt(0)")
        e("s_memrealtime s[66:67]")
        e("s_waitcnt lgkmcnt(0)")
        e("s_lshl_b32 s68, s2, 9")
        e("s_lshl_b32 s69, s18, 6")
        e("s_add_u32 s68, s68, s69")
        e("s_add_u32 s58, s58, s68")
        e("s_addc_u32 s59, s59, 0")
        for i in range(8):
            e(f"v_mov_b32 v{16+i}, s{60+i}")
        e("v_mov_b32 v24, 0")
        e("s_mov_b64 exec, 1")
        e("global_store_dwordx4 v24, v[16:19], s[58:59]")
        e("global_store_dwordx4 v24, v[20:23], s[58:59] offset:16")
    e("s_endpgm")

    g.lab("L_producer")
    e("s_sub_u32 s21, s18, 4")
    e("s_waitcnt lgkmcnt(0)")
    e("s_lshl_b32 s22, s19, 19")
    e("s_add_u32 s24, s4, s22")
    e("s_addc_u32 s25, s5, 0")
    e("s_and_b32 s25, s25, 0xffff")
    e("s_mov_b32 s26, 524288")
    e("s_mov_b32 s27, 0x20000")
    e("s_lshl_b32 s22, s20, 9")
    e("s_add_u32 s28, s6, s22")
    e("s_addc_u32 s29, s7, 0")
    e("s_and_b32 s29, s29, 0xffff")
    e("s_sub_u32 s30, 14680064, s22")
    e("s_mov_b32 s31, 0x20000")
    e("s_lshl_b32 s22, s20, 8")
    e("s_add_u32 s32, s8, s22")
    e("s_addc_u32 s33, s9, 0")
    e("s_and_b32 s33, s33, 0xffff")
    e("s_sub_u32 s34, 114688, s22")
    e("s_mov_b32 s35, 0x20000")
    e("s_add_u32 s36, s10, s22")
    e("s_addc_u32 s37, s11, 0")
    e("s_and_b32 s37, s37, 0xffff")
    e("s_mov_b32 s38, s34")
    e("s_mov_b32 s39, 0x20000")
    e("s_mov_b32 s40, s12")
    e("s_and_b32 s41, s13, 0xffff")
    e("s_mov_b32 s42, 2048")
    e("s_mov_b32 s43, 0x20000")
    for j in range(1, 8):
        e(f"s_mov_b32 s{43+j}, {j*14336}")
        e(f"s_mov_b32 s{50+j}, {j*65536}")
    e("s_mov_b32 s70, 0xffff0000")
    e("v_lshrrev_b32 v8, 3, v7")
    e("s_lshl_b32 s22, s21, 3")
    e("v_add_u32 v8, s22, v8")
    e("v_lshrrev_b32 v9, 5, v7")
    e("v_lshrrev_b32 v10, 4, v7")
    e("v_xor_b32 v10, v9, v10")
    e("v_and_b32 v10, 1, v10")
    e("v_lshlrev_b32 v10, 2, v10")
    e("v_or_b32 v10, s21, v10")
    e("v_and_b32 v11, 7, v7")
    e("v_xor_b32 v10, v10, v11")
    e("v_lshlrev_b32 v10, 4, v10")
    e("v_lshl_add_u32 v1, v8, 11, v10")
    e("v_and_b32 v11, 31, v7")
    e("s_lshl_b32 s22, s21, 1")
    e("v_add_u32 v9, s22, v9")
    e("s_mov_b32 s22, 114688")
    e("v_mul_lo_u32 v2, v9, s22")
    e("v_lshl_add_u32 v2, v11, 4, v2")
    e("v_lshlrev_b32 v3, 3, v11")
    e("v_lshlrev_b32 v4, 4, v9")
    e("v_and_b32 v12, 3, v11")
    e("v_bfe_u32 v13, v11, 2, 1")
    e("v_lshrrev_b32 v14, 3, v11")
    e("v_lshlrev_b32 v14, 5, v14")
    e("v_lshl_add_u32 v14, v12, 3, v14")
    e("v_lshl_add_u32 v14, v13, 2, v14")
    e("v_lshl_or_b32 v12, v13, 2, v12")
    e("v_xor_b32 v12, v12, v9")
    e("v_lshlrev_b32 v12, 4, v12")
    e("v_lshl_add_u32 v5, v14, 7, v12")
    e(f"v_add_u32 v5, {WRING}, v5")
    e("v_xor_b32 v6, 64, v5")
    e("s_lshl_b32 s23, s21, 10")

    vq = Q(63)
    SC, ZC, AJ = 8, 12, 16
    TT = [24, 28]
    TT2 = [72, 76]
    DD = 32
    def sb(b): return 48 + 8 * b if b < 3 else 80
    def qb(b): return 128 + 32 * b
    def issue_x(u, j):
        if u >= NT: return
        st = u % 4
        e(f"s_add_u32 m0, s23, {XRING + st*32768 + j*4096}")
        so = "0" if j == 0 else f"s{50+j}"
        if not opt.nox:
            e(f"buffer_load_dwordx4 v1, s[24:27], {so} offen offset:{0} lds")
            vq.issue(("X", u))
        if j == 7:
            e("v_add_u32 v1, 128, v1")
    def issue_s(u):
        if u >= NT: return
        b = u % 4
        r = sb(b)
        e(f"buffer_load_dwordx2 v[{r}:{r+1}], v3, s[32:35], 0 offen"); vq.issue(("S", u))
        e(f"buffer_load_dwordx2 v[{r+2}:{r+3}], v3, s[36:39], 0 offen"); vq.issue(("S", u))
        e(f"buffer_load_dwordx4 v[{r+4}:{r+7}], v4, s[40:43], 0 offen"); vq.issue(("S", u))
        e("v_add_u32 v3, 7168, v3")
        e("v_add_u32 v4, 128, v4")
    def issue_q(u, j):
        if u >= NT: return
        b = u % 4
        r = qb(b) + 4 * j
        so = "0" if j == 0 else f"s{43+j}"
        if not opt.noq:
            e(f"buffer_load_dwordx4 v[{r}:{r+3}], v2, s[28:31], {so} offen{opt.qmod}")
            vq.issue(("Q", u))
        if j == 7:
            e("v_add_u32 v2, 917504, v2")
    lastv = [None]
    def vwait(tags):
        n = vq.need(tags)
        if n is None: return
        done_upto = len(vq.ops) - n
        if lastv[0] is not None and lastv[0] >= done_upto: return
        lastv[0] = done_upto
        e(f"s_waitcnt vmcnt({n})")
    issue_s(0)
    for j in range(8): issue_q(0, j)
    for j in range(8): issue_x(0, j)
    issue_s(1)
    for j in range(8): issue_q(1, j)
    for j in range(8): issue_x(1, j)
    issue_s(2)
    for j in range(8): issue_q(2, j)
    issue_s(3)
    for j in range(8): issue_q(3, j)
    for t in range(-1, NT - 1):
        u = t + 1
        b = u % 4
        g.c(f"producer iteration t={t} dequant u={u}")
        vwait({("S", u)})
        r = sb(b)
        if not opt.nodq:
            e(f"v_lshlrev_b32 v{SC+0}, 16, v{r}")
            e(f"v_and_b32 v{SC+1}, s70, v{r}")
            e(f"v_lshlrev_b32 v{SC+2}, 16, v{r+1}")
            e(f"v_and_b32 v{SC+3}, s70, v{r+1}")
            e(f"v_lshlrev_b32 v{ZC+0}, 16, v{r+2}")
            e(f"v_and_b32 v{ZC+1}, s70, v{r+2}")
            e(f"v_lshlrev_b32 v{ZC+2}, 16, v{r+3}")
            e(f"v_and_b32 v{ZC+3}, s70, v{r+3}")
            for c in range(4):
                e(f"v_mul_f32_e64 v{ZC+c}, -v{ZC+c}, v{SC+c}")
            for jj in range(4):
                e(f"v_lshlrev_b32 v{AJ+2*jj}, 16, v{r+4+jj}")
                e(f"v_and_b32 v{AJ+2*jj+1}, s70, v{r+4+jj}")
        issue_s(u + 4)
        for i in range(4):
            vwait({("Q", u)} if i == 0 else set())
            T = TT if i % 2 == 0 else TT2
            issue_x(t + 3, 2 * i)
            if not opt.nodq:
                for jj in range(2):
                    for c in range(4):
                        e(f"v_cvt_f32_i32 v{T[jj]+c}, v{qb(b)+4*(2*i+jj)+c}")
            issue_q(u + 4, 2 * i)
            if not opt.nodq:
                for jj in range(2):
                    for c in range(4):
                        e(f"v_fma_f32 v{T[jj]+c}, v{T[jj]+c}, v{SC+c}, v{ZC+c}")
            issue_q(u + 4, 2 * i + 1)
            if not opt.nodq:
                for jj in range(2):
                    for c in range(4):
                        e(f"v_mul_f32 v{T[jj]+c}, v{T[jj]+c}, v{AJ+2*i+jj}")
            issue_x(t + 3, 2 * i + 1)
            if not opt.nodq:
                for c in range(4):
                    e(f"v_cvt_pk_bf16_f32 v{DD+4*c+i}, v{T[0]+c}, v{T[1]+c}")
        par = (u & 1) * 16384
        if not opt.nodq:
            e(f"ds_write_b128 v5, v[{DD}:{DD+3}] offset:{par}")
            e(f"ds_write_b128 v5, v[{DD+4}:{DD+7}] offset:{par+128}")
            e(f"ds_write_b128 v6, v[{DD+8}:{DD+11}] offset:{par+256}")
            e(f"ds_write_b128 v6, v[{DD+12}:{DD+15}] offset:{par+384}")
        if t == NT - 2:
            e("s_waitcnt vmcnt(0) lgkmcnt(0)")
        else:
            vwait({("X", u)})
            e("s_waitcnt lgkmcnt(0)")
        e("s_barrier")
    if opt.stamp:
        e("s_memrealtime s[62:63]")
        e("s_waitcnt lgkmcnt(0)")
        e("s_lshl_b32 s68, s2, 9")
        e("s_lshl_b32 s69, s18, 6")
        e("s_add_u32 s68, s68, s69")
        e("s_add_u32 s58, s58, s68")
        e("s_addc_u32 s59, s59, 0")
        for i in range(4):
            e(f"v_mov_b32 v{16+i}, s{60+i}")
        e("v_mov_b32 v24, 0")
        e("s_mov_b64 exec, 1")
        e("global_store_dwordx4 v24, v[16:19], s[58:59]")
    g.lab("L_end")
    e("s_endpgm")

    hdr = HEADER + f"; @launch grid=({NWG},1,1) block=(512,1,1) lds=163840\n"
    pre = f""".amdgcn_target "amdgcn-amd-amdhsa--gfx950"
.text
.globl {KNAME}
.p2align 8
.type {KNAME},@function
{KNAME}:
"""
    post = f""".section .rodata,"a"
.p2align 6
.amdhsa_kernel {KNAME}
  .amdhsa_next_free_vgpr 256
  .amdhsa_next_free_sgpr 96
  .amdhsa_accum_offset 256
  .amdhsa_group_segment_fixed_size 0
  .amdhsa_kernarg_size 64
  .amdhsa_user_sgpr_count 2
  .amdhsa_user_sgpr_kernarg_segment_ptr 1
  .amdhsa_system_sgpr_workgroup_id_x 1
.end_amdhsa_kernel
"""
    return hdr + pre + "\n".join(g.L) + "\n" + post

if __name__ == "__main__":
    ap = argparse.ArgumentParser()
    ap.add_argument("-o", default="k.s")
    ap.add_argument("--stamp", action="store_true")
    ap.add_argument("--nomfma", action="store_true")
    ap.add_argument("--nodq", action="store_true")
    ap.add_argument("--nox", action="store_true")
    ap.add_argument("--noq", action="store_true")
    ap.add_argument("--rpm", type=int, default=1)
    ap.add_argument("--map", type=int, default=0)
    ap.add_argument("--stmod", default="")
    ap.add_argument("--qmod", default="")
    opt = ap.parse_args()
    if opt.stmod: opt.stmod = " " + opt.stmod
    if opt.qmod: opt.qmod = " " + opt.qmod
    open(opt.o, "w").write(gen(opt))
```

```python
import sys, argparse

KNAME = "standalone__weight_only_int_omniquant__prompt_kernel"
HEADER = """; Kernarg layout for this problem (64 bytes, ptrs only, base s[0:1]):
"""

NT = 16
XRING = 0
WRING = 131072

class Stream:
    def __init__(self):
        self.static = []
        self.sites = {}
        self.queues = {"vm": [], "lgkm": []}
        self.maxn = {"vm": 63, "lgkm": 15}
        self.emit = True
    def e(self, s):
        if self.emit: self.static.append("    " + s)
    def lab(self, s):
        if self.emit: self.static.append(s + ":")
    def c(self, s):
        if self.emit: self.static.append("    ; " + s)
    def issue(self, ctr, tag):
        self.queues[ctr].append(tag)
    def wait(self, ctr, site, tags):
        q = self.queues[ctr]
        last = -1
        for i, t in enumerate(q):
            if t in tags: last = i
        n = self.maxn[ctr] if last < 0 else min(len(q) - 1 - last, self.maxn[ctr])
        key = (ctr, site)
        self.sites[key] = min(self.sites.get(key, 99), n)
        if self.emit: self.static.append(("wait", key))
    def resolve(self):
        out = []
        for s in self.static:
            if isinstance(s, tuple):
                ctr, site = s[1]
                n = self.sites[s[1]]
                if n >= self.maxn[ctr]:
                    continue
                out.append(f"    s_waitcnt {'vmcnt' if ctr=='vm' else 'lgkmcnt'}({n})")
            else:
                out.append(s)
        return out

def stamp_store(e, nst, first):
    e("s_waitcnt lgkmcnt(0)")
    e("s_lshl_b32 s56, s2, 11")
    e("s_lshl_b32 s57, s18, 8")
    e("s_add_u32 s56, s56, s57")
    e("s_add_u32 s58, s58, s56")
    e("s_addc_u32 s59, s59, 0")
    e("s_mov_b64 exec, 1")
    e("v_mov_b32 v24, 0")
    for i in range(nst):
        e(f"v_mov_b32 v16, s{first+i}")
        e(f"global_store_dword v24, v16, s[58:59] offset:{4*i}")

def gen(opt):
    NWG = 224
    S = Stream()
    e = S.e
    nstamp = [0]
    def stamp(emit_ok=True):
        if not opt.stamp: return
        e("s_memrealtime s[60:61]")
        e("s_waitcnt lgkmcnt(0)")
        e(f"s_mov_b32 s{62+nstamp[0]}, s60")
        nstamp[0] += 1
    def stamp_dyn():
        if not opt.stamp: return
        e("s_memrealtime s[60:61]")
        e("s_waitcnt lgkmcnt(0)")
        e("s_mov_b32 m0, s57")
        e("s_movreld_b32 s66, s60")
        e("s_add_u32 s57, s57, 1")
    e(f"s_cmp_ge_u32 s2, {NWG}")
    e("s_cbranch_scc1 L_end")
    if opt.stamp:
        e("s_memrealtime s[60:61]")
    e("s_load_dwordx4 s[4:7], s[0:1], 0")
    e("s_load_dwordx4 s[8:11], s[0:1], 16")
    e("s_load_dwordx4 s[12:15], s[0:1], 32")
    if opt.stamp:
        e("s_load_dwordx2 s[58:59], s[0:1], 56")
    e("v_lshrrev_b32 v1, 6, v0")
    e("s_and_b32 s16, s2, 7")
    e("s_lshr_b32 s17, s2, 3")
    e("v_readfirstlane_b32 s18, v1")
    if opt.map == 0:
        e("s_and_b32 s19, s16, 1")
        e("s_lshl_b32 s19, s19, 2")
        e("s_and_b32 s20, s17, 3")
        e("s_add_u32 s19, s19, s20")
        e("s_lshr_b32 s20, s16, 1")
        e("s_mul_i32 s20, s20, 7")
        e("s_lshr_b32 s21, s17, 2")
        e("s_add_u32 s20, s20, s21")
    else:
        e("s_mov_b32 s19, s16")
        e("s_mov_b32 s20, s17")
    e("v_and_b32 v7, 63, v0")
    e("s_cmp_ge_u32 s18, 4")
    e("s_cbranch_scc1 L_producer")

    S.c("consumer")
    e("s_setprio 3")
    e("s_and_b32 s21, s18, 1")
    e("s_lshr_b32 s22, s18, 1")
    e("v_and_b32 v10, 31, v7")
    e("v_lshrrev_b32 v11, 5, v7")
    e("v_lshrrev_b32 v12, 3, v10")
    e("v_lshrrev_b32 v13, 2, v10")
    e("v_lshrrev_b32 v14, 1, v10")
    e("v_xor_b32 v13, v13, v14")
    e("v_and_b32 v13, 1, v13")
    e("v_lshl_or_b32 v12, v13, 2, v12")
    e("v_xor_b32 v12, v12, v11")
    e("v_lshlrev_b32 v12, 4, v12")
    e("v_lshl_add_u32 v12, v10, 7, v12")
    e("s_lshl_b32 s23, s21, 14")
    e("s_lshl_b32 s24, s22, 13")
    e(f"s_add_u32 s24, s24, {WRING}")
    XA = [2, 3, 4, 5]
    WA = [64, 65, 66, 67]
    for ks in range(4):
        e(f"v_xor_b32 v13, {ks*32}, v12")
        e(f"v_add_u32 v{XA[ks]}, s23, v13")
        e(f"v_add_u32 v{WA[ks]}, s24, v13")
    for r in range(128, 256):
        e(f"v_mov_b32 v{r}, 0")
    F = [dict(x=[16, 20, 24, 28], w=[32, 36]), dict(x=[40, 44, 48, 52], w=[56, 60])]
    for r in range(40, 64):
        e(f"v_mov_b32 v{r}, 0")
    e("s_waitcnt lgkmcnt(0)")
    if opt.stamp:
        e("s_mov_b32 s62, s60")
        e("s_mov_b32 s57, 0")
        nstamp[0] = 1
    e("s_mov_b32 s28, 0")
    def acc(tn, tm):
        b = 128 + (tn * 4 + tm) * 16
        return f"v[{b}:{b+15}]"
    def rd(buf, kind, idx, t, ks):
        if opt.noc: return
        if kind == "x":
            r = F[buf]["x"][idx]; off = idx * 4096 + (t & 1) * 32768
            e(f"ds_read_b128 v[{r}:{r+3}], v{XA[ks]} offset:{off}")
        else:
            r = F[buf]["w"][idx]; off = idx * 4096 + (t & 1) * 16384
            e(f"ds_read_b128 v[{r}:{r+3}], v{WA[ks]} offset:{off}")
        S.issue("lgkm", (t, ks, kind, idx))
    order = [("w", 0), ("x", 0), ("x", 1), ("x", 2), ("x", 3), ("w", 1)]
    def phase(mf, rdspec, site):
        reads = list(order) if rdspec else []
        mfs = [(tn, tm) for tn in range(2) for tm in range(4)]
        ri = 0
        for mi, (tn, tm) in enumerate(mfs):
            for _ in range(opt.rpm):
                if ri < len(reads):
                    kind, idx = reads[ri]; ri += 1
                    rd(rdspec[2], kind, idx, rdspec[0], rdspec[1])
            t, ks, buf = mf
            if mi <= 4:
                S.wait("lgkm", (site, mi), {(t, ks, "w", tn), (t, ks, "x", tm)})
            if not opt.nomfma:
                xr = F[buf]["x"][tm]; wr = F[buf]["w"][tn]
                e(f"v_mfma_f32_32x32x16_bf16 {acc(tn,tm)}, v[{wr}:{wr+3}], v[{xr}:{xr+3}], {acc(tn,tm)}")
    S.lab("L_cloop")
    for t in range(NT):
        S.emit = t < 2
        par = t & 1
        e("s_waitcnt lgkmcnt(0)")
        S.queues["lgkm"].clear()
        e("s_barrier")
        if opt.stamp >= 2: stamp_dyn()
        elif opt.stamp == 1 and par == 0:
            e("s_cmp_lg_u32 s28, 0")
            e("s_cbranch_scc1 L_nost")
            stamp_dyn()
            S.lab("L_nost")
        phase((t-1, 3, 1), (t, 0, 0), (par, 0))
        phase((t, 0, 0), (t, 1, 1), (par, 1))
        phase((t, 1, 1), (t, 2, 0), (par, 2))
        phase((t, 2, 0), (t, 3, 1), (par, 3))
        if par == 1:
            for ks in range(4):
                e(f"v_xor_b32 v{XA[ks]}, 0x10000, v{XA[ks]}")
            e("s_add_u32 s28, s28, 1")
            e(f"s_cmp_lt_u32 s28, {NT//2}")
            e("s_cbranch_scc1 L_cloop")
    S.emit = True
    e("s_waitcnt lgkmcnt(0)")
    S.queues["lgkm"].clear()
    phase((NT-1, 3, 1), None, ("fin", 0))
    stamp()
    S.c("epilogue")
    e("s_lshl_b32 s25, s19, 8")
    e("s_lshl_b32 s26, s21, 7")
    e("s_add_u32 s25, s25, s26")
    e("s_mul_i32 s25, s25, 7168")
    e("s_lshl_b32 s26, s20, 8")
    e("s_lshl_b32 s27, s22, 7")
    e("s_add_u32 s26, s26, s27")
    e("s_add_u32 s25, s25, s26")
    e("s_add_u32 s40, s14, s25")
    e("s_addc_u32 s41, s15, 0")
    e("s_and_b32 s41, s41, 0xffff")
    e("s_sub_u32 s42, 14680064, s25")
    e("s_mov_b32 s43, 0x20000")
    e("v_and_b32 v12, 7, v10")
    e("v_lshlrev_b32 v13, 1, v11")
    e("v_xor_b32 v12, v12, v13")
    e("v_lshlrev_b32 v12, 4, v12")
    e("v_lshl_add_u32 v12, v10, 7, v12")
    e("s_lshl_b32 s26, s18, 14")
    e("v_add_u32 v12, s26, v12")
    for tn in range(2):
        for q in range(2):
            e(f"v_xor_b32 v{68+tn*2+q}, {(4*tn+q)<<4}, v12")
    e("v_lshrrev_b32 v13, 3, v7")
    e("v_and_b32 v14, 7, v7")
    e("v_xor_b32 v15, v14, v13")
    e("v_and_b32 v15, 7, v15")
    e("v_lshlrev_b32 v15, 4, v15")
    e("v_lshl_add_u32 v15, v13, 7, v15")
    e("v_add_u32 v72, s26, v15")
    e("v_mul_u32_u24 v73, 7168, v13")
    e("v_lshl_add_u32 v73, v14, 4, v73")
    e("s_nop 7")
    T = 80
    k = 0
    for tm in range(4):
        for tn in range(2):
            b = 128 + (tn * 4 + tm) * 16
            tb = T + (k % 4) * 8
            for d in range(8):
                e(f"v_cvt_pk_bf16_f32 v{tb+d}, v{b+2*d}, v{b+2*d+1}")
            for q in range(2):
                e(f"ds_write_b128 v{68+tn*2+q}, v[{tb+4*q}:{tb+4*q+3}] offset:{tm*4096}")
            k += 1
    e("s_waitcnt lgkmcnt(0)")
    e("s_mov_b32 s27, 0")
    R = 16
    for it in range(16):
        r = R + (it % 8) * 4
        e(f"ds_read_b128 v[{r}:{r+3}], v72 offset:{it*1024}")
        if it >= 7:
            j = it - 7
            rr = R + (j % 8) * 4
            e(f"s_waitcnt lgkmcnt(7)")
            e(f"buffer_store_dwordx4 v[{rr}:{rr+3}], v73, s[40:43], s27 offen{opt.stmod}")
            e(f"s_add_u32 s27, s27, 57344")
    for j in range(9, 16):
        rr = R + (j % 8) * 4
        e(f"s_waitcnt lgkmcnt({15-j})")
        e(f"buffer_store_dwordx4 v[{rr}:{rr+3}], v73, s[40:43], s27 offen{opt.stmod}")
        e(f"s_add_u32 s27, s27, 57344")
    if opt.stamp:
        stamp()
        e("s_waitcnt vmcnt(0)")
        stamp()
        stamp_store(e, 24, 62)
    e("s_endpgm")

    S.lab("L_producer")
    nstamp[0] = 0
    e("s_sub_u32 s21, s18, 4")
    e("s_waitcnt lgkmcnt(0)")
    if opt.stamp:
        e("s_mov_b32 s62, s60")
        nstamp[0] = 1
        stamp()
    e("s_lshl_b32 s22, s19, 19")
    e("s_add_u32 s24, s4, s22")
    e("s_addc_u32 s25, s5, 0")
    e("s_and_b32 s25, s25, 0xffff")
    e("s_mov_b32 s26, 524288")
    e("s_mov_b32 s27, 0x20000")
    e("s_lshl_b32 s22, s20, 9")
    e("s_add_u32 s28, s6, s22")
    e("s_addc_u32 s29, s7, 0")
    e("s_and_b32 s29, s29, 0xffff")
    e("s_sub_u32 s30, 14680064, s22")
    e("s_mov_b32 s31, 0x20000")
    e("s_lshl_b32 s22, s20, 8")
    e("s_add_u32 s32, s8, s22")
    e("s_addc_u32 s33, s9, 0")
    e("s_and_b32 s33, s33, 0xffff")
    e("s_sub_u32 s34, 114688, s22")
    e("s_mov_b32 s35, 0x20000")
    e("s_add_u32 s36, s10, s22")
    e("s_addc_u32 s37, s11, 0")
    e("s_and_b32 s37, s37, 0xffff")
    e("s_mov_b32 s38, s34")
    e("s_mov_b32 s39, 0x20000")
    e("s_mov_b32 s40, s12")
    e("s_and_b32 s41, s13, 0xffff")
    e("s_mov_b32 s42, 2048")
    e("s_mov_b32 s43, 0x20000")
    for j in range(1, 8):
        e(f"s_mov_b32 s{43+j}, {j*14336}")
        e(f"s_mov_b32 s{50+j}, {j*65536}")
    e("s_mov_b32 s90, 0xffff0000")
    e("v_lshrrev_b32 v8, 3, v7")
    e("s_lshl_b32 s22, s21, 3")
    e("v_add_u32 v8, s22, v8")
    e("v_lshrrev_b32 v9, 5, v7")
    e("v_lshrrev_b32 v10, 4, v7")
    e("v_xor_b32 v10, v9, v10")
    e("v_and_b32 v10, 1, v10")
    e("v_lshlrev_b32 v10, 2, v10")
    e("v_or_b32 v10, s21, v10")
    e("v_and_b32 v11, 7, v7")
    e("v_xor_b32 v10, v10, v11")
    e("v_lshlrev_b32 v10, 4, v10")
    e("v_lshl_add_u32 v1, v8, 11, v10")
    e("v_and_b32 v11, 31, v7")
    e("s_lshl_b32 s22, s21, 1")
    e("v_add_u32 v9, s22, v9")
    e("s_mov_b32 s22, 114688")
    e("v_mul_lo_u32 v2, v9, s22")
    e("v_lshl_add_u32 v2, v11, 4, v2")
    e("v_lshlrev_b32 v3, 3, v11")
    e("v_lshlrev_b32 v4, 4, v9")
    e("v_and_b32 v12, 3, v11")
    e("v_bfe_u32 v13, v11, 2, 1")
    e("v_lshrrev_b32 v14, 3, v11")
    e("v_lshlrev_b32 v14, 5, v14")
    e("v_lshl_add_u32 v14, v12, 3, v14")
    e("v_lshl_add_u32 v14, v13, 2, v14")
    e("v_lshl_or_b32 v12, v13, 2, v12")
    e("v_xor_b32 v12, v12, v9")
    e("v_lshlrev_b32 v12, 4, v12")
    e("v_lshl_add_u32 v5, v14, 7, v12")
    e(f"v_add_u32 v5, {WRING}, v5")
    e("v_xor_b32 v6, 64, v5")
    e("s_lshl_b32 s23, s21, 10")
    e("s_mov_b32 s91, 0")

    SC, ZC, AJ = 8, 12, 16
    TT = [24, 28]
    TT2 = [72, 76]
    DD = 32
    def sb(b): return 48 + 8 * b if b < 3 else 80
    def qb(b): return 128 + 32 * b
    def issue_x(u, j):
        st = u % 4
        e(f"s_add_u32 m0, s23, {XRING + st*32768 + j*4096}")
        so = "0" if j == 0 else f"s{50+j}"
        if not opt.nox:
            e(f"buffer_load_dwordx4 v1, s[24:27], {so} offen{opt.xmod} lds")
            S.issue("vm", ("X", u))
        if j == 7:
            e("v_add_u32 v1, %d, v1" % (0 if opt.noadv else 128))
    def issue_s(u):
        b = u % 4
        r = sb(b)
        if opt.nos: return
        e(f"buffer_load_dwordx2 v[{r}:{r+1}], v3, s[32:35], 0 offen"); S.issue("vm", ("S", u))
        e(f"buffer_load_dwordx2 v[{r+2}:{r+3}], v3, s[36:39], 0 offen"); S.issue("vm", ("S", u))
        e(f"buffer_load_dwordx4 v[{r+4}:{r+7}], v4, s[40:43], 0 offen"); S.issue("vm", ("S", u))
        e("v_add_u32 v3, 7168, v3")
        e("v_add_u32 v4, 128, v4")
    def issue_q(u, j):
        b = u % 4
        r = qb(b) + 4 * j
        so = "0" if j == 0 else f"s{43+j}"
        if not opt.noq:
            e(f"buffer_load_dwordx4 v[{r}:{r+3}], v2, s[28:31], {so} offen{opt.qmod}")
            S.issue("vm", ("Q", u))
        if j == 7:
            e("v_add_u32 v2, %d, v2" % (0 if opt.noadv else 917504))
    issue_s(0)
    for j in range(8): issue_q(0, j)
    for j in range(8): issue_x(0, j)
    issue_s(1)
    for j in range(8): issue_q(1, j)
    for j in range(8): issue_x(1, j)
    issue_s(2)
    for j in range(8): issue_q(2, j)
    issue_s(3)
    for j in range(8): issue_q(3, j)
    stamp()
    S.lab("L_ploop")
    for t in range(-1, NT - 1):
        u = t + 1
        b = u % 4
        S.emit = u < 4
        S.c(f"producer sub-iteration b={b}")
        if b == 2:
            e("s_cmp_eq_u32 s91, 3")
            e("s_cselect_b32 s26, 0, 524288")
        S.wait("vm", ("S", b), {("S", u)})
        r = sb(b)
        if not opt.nodq:
            e(f"v_lshlrev_b32 v{SC+0}, 16, v{r}")
            e(f"v_and_b32 v{SC+1}, s90, v{r}")
            e(f"v_lshlrev_b32 v{SC+2}, 16, v{r+1}")
            e(f"v_and_b32 v{SC+3}, s90, v{r+1}")
            e(f"v_lshlrev_b32 v{ZC+0}, 16, v{r+2}")
            e(f"v_and_b32 v{ZC+1}, s90, v{r+2}")
            e(f"v_lshlrev_b32 v{ZC+2}, 16, v{r+3}")
            e(f"v_and_b32 v{ZC+3}, s90, v{r+3}")
            for c in range(4):
                e(f"v_mul_f32_e64 v{ZC+c}, -v{ZC+c}, v{SC+c}")
            for jj in range(4):
                e(f"v_lshlrev_b32 v{AJ+2*jj}, 16, v{r+4+jj}")
                e(f"v_and_b32 v{AJ+2*jj+1}, s90, v{r+4+jj}")
        issue_s(u + 4)
        for i in range(4):
            S.wait("vm", ("Q", b, i), {("Q", u)}) if i == 0 else None
            T = TT if i % 2 == 0 else TT2
            issue_x(t + 3, 2 * i)
            if not opt.nodq:
                for jj in range(2):
                    for c in range(4):
                        e(f"v_cvt_f32_i32 v{T[jj]+c}, v{qb(b)+4*(2*i+jj)+c}")
            issue_q(u + 4, 2 * i)
            if not opt.nodq:
                for jj in range(2):
                    for c in range(4):
                        e(f"v_fma_f32 v{T[jj]+c}, v{T[jj]+c}, v{SC+c}, v{ZC+c}")
            issue_q(u + 4, 2 * i + 1)
            if not opt.nodq:
                for jj in range(2):
                    for c in range(4):
                        e(f"v_mul_f32 v{T[jj]+c}, v{T[jj]+c}, v{AJ+2*i+jj}")
            issue_x(t + 3, 2 * i + 1)
            if not opt.nodq:
                for c in range(4):
                    e(f"v_cvt_pk_bf16_f32 v{DD+4*c+i}, v{T[0]+c}, v{T[1]+c}")
        par = (u & 1) * 16384
        if not opt.nodq:
            e(f"ds_write_b128 v5, v[{DD}:{DD+3}] offset:{par}")
            e(f"ds_write_b128 v5, v[{DD+4}:{DD+7}] offset:{par+128}")
            e(f"ds_write_b128 v6, v[{DD+8}:{DD+11}] offset:{par+256}")
            e(f"ds_write_b128 v6, v[{DD+12}:{DD+15}] offset:{par+384}")
        S.wait("vm", ("X", b), {("X", u)})
        if b == 3:
            e("s_cmp_lg_u32 s91, 3")
            e("s_cbranch_scc1 L_pskip")
            e("s_waitcnt vmcnt(0)")
            S.lab("L_pskip")
        e("s_waitcnt lgkmcnt(0)")
        e("s_barrier")
        if opt.stamp and t == -1:
            pass
        if b == 3:
            e("s_add_u32 s91, s91, 1")
            e("s_cmp_lt_u32 s91, 4")
            e("s_cbranch_scc1 L_ploop")
    S.emit = True
    if opt.stamp:
        stamp()
        stamp_store(e, 8, 62)
    S.lab("L_end")
    e("s_endpgm")

    hdr = HEADER + f"; @launch grid=({NWG},1,1) block=(512,1,1) lds=163840\n"
    pre = f""".amdgcn_target "amdgcn-amd-amdhsa--gfx950"
.text
.globl {KNAME}
.p2align 8
.type {KNAME},@function
{KNAME}:
"""
    post = f""".section .rodata,"a"
.p2align 6
.amdhsa_kernel {KNAME}
  .amdhsa_next_free_vgpr 256
  .amdhsa_next_free_sgpr 96
  .amdhsa_accum_offset 256
  .amdhsa_group_segment_fixed_size 0
  .amdhsa_kernarg_size 64
  .amdhsa_user_sgpr_count 2
  .amdhsa_user_sgpr_kernarg_segment_ptr 1
  .amdhsa_system_sgpr_workgroup_id_x 1
.end_amdhsa_kernel
"""
    return hdr + pre + "\n".join(S.resolve()) + "\n" + post

if __name__ == "__main__":
    ap = argparse.ArgumentParser()
    ap.add_argument("-o", default="k.s")
    ap.add_argument("--stamp", type=int, default=0)
    ap.add_argument("--noc", action="store_true")
    ap.add_argument("--nos", action="store_true")
    ap.add_argument("--nomfma", action="store_true")
    ap.add_argument("--nodq", action="store_true")
    ap.add_argument("--nox", action="store_true")
    ap.add_argument("--noq", action="store_true")
    ap.add_argument("--noadv", action="store_true")
    ap.add_argument("--rpm", type=int, default=1)
    ap.add_argument("--map", type=int, default=0)
    ap.add_argument("--stmod", default="")
    ap.add_argument("--qmod", default="")
    ap.add_argument("--xmod", default="")
    opt = ap.parse_args()
    for k in ("stmod", "qmod", "xmod"):
        v = getattr(opt, k)
        if v: setattr(opt, k, " " + v)
    open(opt.o, "w").write(gen(opt))
```

```python
import sys, argparse

KNAME = "standalone__weight_only_int_omniquant__prompt_kernel"
HEADER = """; Kernarg layout for this problem (64 bytes, ptrs only, base s[0:1]):
;
"""
NT = 16

class Stream:
    def __init__(self):
        self.L = []
        self.reset()
        self.maxn = {"vm": 63, "lgkm": 15}
    def e(self, s): self.L.append("    " + s)
    def lab(self, s): self.L.append(s + ":")
    def c(self, s): self.L.append("    ; " + s)
    def issue(self, ctr, tag): self.q[ctr].append(tag)
    def wait(self, ctr, tags):
        q = self.q[ctr]
        last = -1
        for i, t in enumerate(q):
            if t in tags: last = i
        if last < 0 or last < self.done[ctr]:
            return
        n = min(len(q) - 1 - last, self.maxn[ctr])
        self.done[ctr] = len(q) - n
        self.e(f"s_waitcnt {'vmcnt' if ctr=='vm' else 'lgkmcnt'}({n})")
    def waitall(self, ctr):
        if self.done[ctr] == len(self.q[ctr]) and self.q[ctr]: return
        self.done[ctr] = len(self.q[ctr])
        self.e(f"s_waitcnt {'vmcnt' if ctr=='vm' else 'lgkmcnt'}(0)")
    def reset(self):
        self.q = {"vm": [], "lgkm": []}
        self.done = {"vm": 0, "lgkm": 0}

def stamp_store(e, nst, first):
    e("s_waitcnt lgkmcnt(0)")
    e("s_lshl_b32 s56, s2, 11")
    e("s_lshl_b32 s57, s18, 8")
    e("s_add_u32 s56, s56, s57")
    e("s_add_u32 s58, s58, s56")
    e("s_addc_u32 s59, s59, 0")
    e("s_mov_b64 exec, 1")
    e("v_mov_b32 v24, 0")
    for i in range(nst):
        e(f"v_mov_b32 v16, s{first+i}")
        e(f"global_store_dword v24, v16, s[58:59] offset:{4*i}")

def gen(opt):
    NWG = 224
    NX = opt.nx
    NQ = opt.nq
    XRING = 0
    WRING = NX * 32768
    STAB = WRING + 32768
    ZTAB = STAB + 8192
    ATAB = ZTAB + 8192
    LDS = ATAB + 4096
    last_st = (NT - 1) % NX
    if NX == 3:
        EPI = 32768 if last_st == 0 else None
    elif NX == 2:
        EPI = None
    else:
        EPI = 0 if last_st >= 2 else 65536
    if NX == 2:
        EPI = LDS
        LDS += 65536
    assert EPI is not None and LDS <= 163840, (EPI, LDS)
    S = Stream()
    e = S.e
    nstamp = [0]
    def stamp():
        if not opt.stamp: return
        e("s_memrealtime s[60:61]")
        e("s_waitcnt lgkmcnt(0)")
        S.done["lgkm"] = len(S.q["lgkm"])
        e(f"s_mov_b32 s{62+nstamp[0]}, s60")
        nstamp[0] += 1
    RM = opt.rotn - 1
    e(f"s_cmp_ge_u32 s2, {NWG}")
    e("s_cbranch_scc1 L_end")
    if opt.stamp:
        e("s_memrealtime s[60:61]")
    e("s_load_dwordx8 s[4:11], s[0:1], 0")
    e("s_load_dwordx4 s[12:15], s[0:1], 32")
    if opt.stamp:
        e("s_load_dwordx2 s[58:59], s[0:1], 56")
    e("v_lshrrev_b32 v1, 6, v0")
    e("s_and_b32 s16, s2, 7")
    e("s_lshr_b32 s17, s2, 3")
    e("v_readfirstlane_b32 s18, v1")
    e("s_and_b32 s19, s16, 1")
    e("s_lshl_b32 s19, s19, 2")
    e("s_and_b32 s20, s17, 3")
    e("s_lshr_b32 s21, s17, 2")
    e(f"s_mul_i32 s93, s20, {opt.rm}")
    e("s_add_u32 s19, s19, s20")
    e("s_lshr_b32 s20, s16, 1")
    e("s_mul_i32 s20, s20, 7")
    e("s_add_u32 s20, s20, s21")
    e(f"s_mul_i32 s21, s21, {opt.rn}")
    e("s_add_u32 s93, s93, s21")
    e(f"s_and_b32 s93, s93, {RM}")
    e("v_and_b32 v7, 63, v0")
    e("s_cmp_ge_u32 s18, 4")
    e("s_cbranch_scc1 L_producer")

    S.c("consumer waves")
    e("v_lshrrev_b32 v12, 4, v0")
    e("v_and_b32 v13, 15, v0")
    e("v_mul_u32_u24 v14, 7168, v12")
    e("v_lshl_add_u32 v14, v13, 4, v14")
    e("v_lshlrev_b32 v15, 3, v0")
    e("s_lshl_b32 s23, s20, 8")
    e("s_sub_u32 s34, 114688, s23")
    e("s_mov_b32 s35, 0x20000")
    e("s_mov_b32 s38, s34")
    e("s_mov_b32 s39, 0x20000")
    e("s_mov_b32 s42, 2048")
    e("s_mov_b32 s43, 0x20000")
    e("s_waitcnt lgkmcnt(0)")
    e("s_add_u32 s32, s8, s23")
    e("s_addc_u32 s33, s9, 0")
    e("s_and_b32 s33, s33, 0xffff")
    e("s_add_u32 s36, s10, s23")
    e("s_addc_u32 s37, s11, 0")
    e("s_and_b32 s37, s37, 0xffff")
    e("s_mov_b32 s40, s12")
    e("s_and_b32 s41, s13, 0xffff")
    e("buffer_load_dwordx4 v[16:19], v14, s[32:35], 0 offen")
    e("buffer_load_dwordx4 v[20:23], v14, s[36:39], 0 offen")
    e("buffer_load_dwordx2 v[24:25], v15, s[40:43], 0 offen")
    if opt.stamp:
        e("s_mov_b32 s62, s60")
        nstamp[0] = 1
    e(f"s_setprio {opt.cprio}")
    e("s_and_b32 s21, s18, 1")
    e("s_lshr_b32 s22, s18, 1")
    e("v_and_b32 v10, 31, v7")
    e("v_lshrrev_b32 v11, 5, v7")
    e("v_lshrrev_b32 v2, 3, v10")
    e("v_lshrrev_b32 v3, 2, v10")
    e("v_lshrrev_b32 v4, 1, v10")
    e("v_xor_b32 v3, v3, v4")
    e("v_and_b32 v3, 1, v3")
    e("v_lshl_or_b32 v2, v3, 2, v2")
    e("v_xor_b32 v2, v2, v11")
    e("v_lshlrev_b32 v2, 4, v2")
    e("v_lshl_add_u32 v9, v10, 7, v2")
    e("s_lshl_b32 s23, s21, 14")
    e("s_lshl_b32 s24, s22, 13")
    e(f"s_add_u32 s24, s24, {WRING}")
    XA = [2, 3, 4, 5]
    XB = [68, 69, 70, 71]
    WA = [64, 65, 66, 67]
    for ks in range(4):
        e(f"v_xor_b32 v8, {ks*32}, v9")
        e(f"v_add_u32 v{XA[ks]}, s23, v8")
        e(f"v_add_u32 v{WA[ks]}, s24, v8")
        if NX > 2: e(f"v_add_u32 v{XB[ks]}, 0x10000, v{XA[ks]}")
    for r in range(128, 256):
        e(f"v_mov_b32 v{r}, 0")
    e("s_mov_b32 s31, 0xffff0000")
    e("s_mov_b32 s30, 0x4b800000")
    e("v_subrev_u32 v74, s93, v12")
    e(f"v_and_b32 v74, {RM}, v74")
    if RM != 15:
        e(f"v_and_b32 v75, {15 - RM}, v12")
        e("v_or_b32 v74, v74, v75")
    e("v_lshlrev_b32 v72, 9, v74")
    e("v_lshl_add_u32 v72, v13, 5, v72")
    e(f"v_add_u32 v72, {STAB}, v72")
    e("v_lshlrev_b32 v73, 8, v74")
    e("v_lshl_add_u32 v73, v13, 4, v73")
    e(f"v_add_u32 v73, {ATAB}, v73")
    e("s_waitcnt vmcnt(0)")
    for d in range(4):
        e(f"v_lshlrev_b32 v{80+2*d}, 16, v{16+d}")
        e(f"v_and_b32 v{81+2*d}, s31, v{16+d}")
        e(f"v_lshlrev_b32 v{88+2*d}, 16, v{20+d}")
        e(f"v_and_b32 v{89+2*d}, s31, v{20+d}")
    for d in range(8):
        e(f"v_mul_f32_e64 v{88+d}, -v{88+d}, v{80+d}")
    if not opt.cvt:
        for d in range(8):
            e(f"v_mul_f32 v{80+d}, s30, v{80+d}")
    for d in range(2):
        e(f"v_lshlrev_b32 v{96+2*d}, 16, v{24+d}")
        e(f"v_and_b32 v{97+2*d}, s31, v{24+d}")
    e("ds_write_b128 v72, v[80:83]")
    e("ds_write_b128 v72, v[84:87] offset:16")
    e("ds_write_b128 v72, v[88:91] offset:8192")
    e("ds_write_b128 v72, v[92:95] offset:8208")
    e("ds_write_b128 v73, v[96:99]")
    e("s_lshl_b32 s25, s19, 8")
    e("s_lshl_b32 s26, s21, 7")
    e("s_add_u32 s25, s25, s26")
    e("s_mul_i32 s25, s25, 7168")
    e("s_lshl_b32 s26, s20, 8")
    e("s_lshl_b32 s27, s22, 7")
    e("s_add_u32 s26, s26, s27")
    e("s_add_u32 s25, s25, s26")
    e("s_add_u32 s40, s14, s25")
    e("s_addc_u32 s41, s15, 0")
    e("s_and_b32 s41, s41, 0xffff")
    e("s_sub_u32 s42, 14680064, s25")
    e("s_mov_b32 s43, 0x20000")
    e("v_and_b32 v12, 7, v10")
    e("v_lshlrev_b32 v13, 1, v11")
    e("v_xor_b32 v12, v12, v13")
    e("v_lshlrev_b32 v12, 4, v12")
    e("v_lshl_add_u32 v12, v10, 7, v12")
    e("s_lshl_b32 s26, s18, 14")
    e(f"s_add_u32 s26, s26, {EPI}")
    e("v_add_u32 v12, s26, v12")
    EW = [72, 73, 74, 75]
    e("s_waitcnt lgkmcnt(0)")
    for tn in range(2):
        for q in range(2):
            e(f"v_xor_b32 v{EW[tn*2+q]}, {(4*tn+q)<<4}, v12")
    e("v_lshrrev_b32 v13, 3, v7")
    e("v_and_b32 v14, 7, v7")
    e("v_xor_b32 v15, v14, v13")
    e("v_lshlrev_b32 v15, 4, v15")
    e("v_lshl_add_u32 v15, v13, 7, v15")
    e("v_add_u32 v76, s26, v15")
    e("v_mul_u32_u24 v77, 7168, v13")
    e("v_lshl_add_u32 v77, v14, 4, v77")
    e("s_barrier")
    stamp()
    F = [dict(x=[16, 20, 24, 28], w=[32, 36]), dict(x=[40, 44, 48, 52], w=[56, 60])]
    def acc(tn, tm):
        b = 128 + (tn * 4 + tm) * 16
        return f"v[{b}:{b+15}]"
    def rd(buf, kind, idx, t, ks):
        if opt.noc: return
        if kind == "x":
            r = F[buf]["x"][idx]
            st = t % NX
            if st < 2: a, off = XA[ks], idx * 4096 + st * 32768
            else: a, off = XB[ks], idx * 4096 + (st - 2) * 32768
            e(f"ds_read_b128 v[{r}:{r+3}], v{a} offset:{off}")
        else:
            r = F[buf]["w"][idx]; off = idx * 4096 + (t & 1) * 16384
            e(f"ds_read_b128 v[{r}:{r+3}], v{WA[ks]} offset:{off}")
        S.issue("lgkm", (t, ks, kind, idx))
    def phase(mf, rdspec, tm_major=False):
        if opt.morder == 1 or tm_major:
            mfs = [(tn, tm) for tm in range(4) for tn in range(2)]
            order = [("w", 0), ("x", 0), ("w", 1), ("x", 1), ("x", 2), ("x", 3)]
        else:
            mfs = [(tn, tm) for tn in range(2) for tm in range(4)]
            order = [("w", 0), ("x", 0), ("x", 1), ("x", 2), ("x", 3), ("w", 1)]
        if opt.morder == 1:
            order = [("w", 0), ("x", 0), ("w", 1), ("x", 1), ("x", 2), ("x", 3)]
        else:
            order = [("w", 0), ("x", 0), ("x", 1), ("x", 2), ("x", 3), ("w", 1)]
        reads = list(order) if rdspec else []
        if mf is None:
            for kind, idx in reads: rd(rdspec[2], kind, idx, rdspec[0], rdspec[1])
            return
        ri = 0
        for mi, (tn, tm) in enumerate(mfs):
            for _ in range(opt.rpm):
                if ri < len(reads):
                    kind, idx = reads[ri]; ri += 1
                    rd(rdspec[2], kind, idx, rdspec[0], rdspec[1])
            t, ks, buf = mf
            S.wait("lgkm", {(t, ks, "w", tn), (t, ks, "x", tm)})
            if not opt.nomfma:
                xr = F[buf]["x"][tm]; wr = F[buf]["w"][tn]
                e(f"v_mfma_f32_32x32x16_bf16 {acc(tn,tm)}, v[{wr}:{wr+3}], v[{xr}:{xr+3}], {acc(tn,tm)}")
    for t in range(NT):
        if t > 0: S.waitall("lgkm")
        e("s_barrier")
        if opt.stamp >= 2 or (opt.stamp == 1 and t == 0):
            if t == 0: e("s_memtime s[88:89]")
            stamp()
            if t == 0: e("s_mov_b32 s86, s88")
        phase((t-1, 3, 1) if t > 0 else None, (t, 0, 0))
        phase((t, 0, 0), (t, 1, 1))
        phase((t, 1, 1), (t, 2, 0))
        phase((t, 2, 0), (t, 3, 1))
    S.waitall("lgkm")
    phase((NT-1, 3, 1), None, tm_major=True)
    if opt.stamp:
        e("s_memtime s[88:89]")
        nstamp[0] = 20
        stamp()
        e("s_mov_b32 s87, s88")
    S.c("epilogue")
    S.reset()
    T = 80
    R = 16
    e("s_mov_b32 s27, 0")
    def store(it):
        rr = R + (it % 8) * 4
        S.wait("lgkm", {("R", it)})
        e(f"buffer_store_dwordx4 v[{rr}:{rr+3}], v77, s[40:43], s27 offen{opt.stmod}")
        e(f"s_add_u32 s27, s27, 57344")
    if opt.stamp: e("s_nop 7")
    for tm in range(4):
        for tn in range(2):
            b = 128 + (tn * 4 + tm) * 16
            tb = T + ((tm * 2 + tn) % 4) * 8
            if tm == 3 and tn == 0 and not opt.stamp:
                e("s_nop 3")
            for d in range(8):
                e(f"v_cvt_pk_bf16_f32 v{tb+d}, v{b+2*d}, v{b+2*d+1}")
            for q in range(2):
                e(f"ds_write_b128 v{EW[tn*2+q]}, v[{tb+4*q}:{tb+4*q+3}] offset:{tm*4096}")
                S.issue("lgkm", ("EWr", tm))
            if tm > 0:
                store((tm - 1) * 4 + tn * 2); store((tm - 1) * 4 + tn * 2 + 1)
        for k in range(4):
            it = tm * 4 + k
            r = R + (it % 8) * 4
            e(f"ds_read_b128 v[{r}:{r+3}], v76 offset:{it*1024}")
            S.issue("lgkm", ("R", it))
    for it in range(12, 16): store(it)
    if opt.stamp:
        stamp()
        e("s_waitcnt vmcnt(0)")
        stamp()
        stamp_store(e, 26, 62)
    e("s_endpgm")

    S.reset()
    S.lab("L_producer")
    nstamp[0] = 0
    e("s_sub_u32 s21, s18, 4")
    if opt.pprio: e(f"s_setprio {opt.pprio}")
    e("v_lshrrev_b32 v9, 5, v7")
    e("v_and_b32 v11, 31, v7")
    e("s_lshl_b32 s22, s21, 1")
    e("v_add_u32 v9, s22, v9")
    e("v_mul_u32_u24 v2, 114688, v9")
    e("v_lshl_add_u32 v2, v11, 4, v2")
    for j in range(1, 8):
        e(f"s_mov_b32 s{43+j}, {j*14336}")
    e("s_mov_b32 s30, 903680")
    e("s_mov_b32 s31, 0x20000")
    e("s_lshl_b32 s22, s20, 9")
    e("s_mul_i32 s16, s93, 917504")
    e("s_add_u32 s22, s22, 0")
    e("s_waitcnt lgkmcnt(0)")
    e("s_add_u32 s8, s6, s22")
    e("s_addc_u32 s9, s7, 0")
    e("s_and_b32 s9, s9, 0xffff")
    def set_k(u, which):
        e(f"s_add_u32 s12, s93, {u & RM}")
        e(f"s_and_b32 s12, s12, {RM}")
        if u & ~RM: e(f"s_or_b32 s12, s12, {u & ~RM}")
        if opt.noadv: e("s_mov_b32 s12, 0")
        if which == "q":
            e("s_mul_i32 s12, s12, 917504")
            e("s_add_u32 s28, s8, s12")
            e("s_addc_u32 s29, s9, 0")
        else:
            e("s_lshl_b32 s12, s12, 7")
            e("s_add_u32 s24, s10, s12")
            e("s_addc_u32 s25, s11, 0")
    def qb(b): return 256 - 32 * NQ + 32 * b
    def issue_x(u, j):
        st = u % NX
        if j % 4 == 0:
            e(f"s_add_u32 m0, s23, {XRING + st*32768 + (j>>2)*4096}")
        if j == 0: set_k(u, "x")
        if j == 4: e("s_nop 0")
        so = "0" if j == 0 else f"s{50+j}"
        if not opt.nox:
            off = (j & 3) * 1024
            e(f"buffer_load_dwordx4 v{80+(j&3)}, s[24:27], {so} offen offset:{off}{opt.xmod} lds")
            S.issue("vm", ("X", u))
    def issue_q(u, j):
        b = u % NQ
        if j == 0: set_k(u, "q")
        r = qb(b) + 4 * j
        so = "0" if j == 0 else f"s{43+j}"
        if not opt.noq:
            e(f"buffer_load_dwordx4 v[{r}:{r+3}], v2, s[28:31], {so} offen{opt.qmod}")
            S.issue("vm", ("Q", u))
    for j in range(8): issue_q(0, j)
    if opt.stamp:
        e("s_mov_b32 s62, s60")
        nstamp[0] = 1
    e("v_lshrrev_b32 v8, 3, v7")
    e("s_lshl_b32 s22, s21, 6")
    e("v_add_u32 v8, s22, v8")
    e("v_lshrrev_b32 v13, 5, v7")
    e("v_lshrrev_b32 v10, 4, v7")
    e("v_xor_b32 v10, v13, v10")
    e("v_and_b32 v10, 1, v10")
    e("v_lshlrev_b32 v10, 2, v10")
    e("v_and_b32 v12, 7, v7")
    e("v_xor_b32 v10, v10, v12")
    e("v_lshlrev_b32 v10, 4, v10")
    e("v_lshl_add_u32 v80, v8, 11, v10")
    for jj in range(1, 4):
        e(f"v_xor_b32 v{80+jj}, {jj<<4}, v80")
    for j in range(1, 8):
        e(f"s_mov_b32 s{50+j}, {j*16384 - (j&3)*1024}")
    e("s_lshl_b32 s23, s21, 13")
    e("s_lshl_b32 s22, s19, 19")
    e("s_add_u32 s10, s4, s22")
    e("s_addc_u32 s11, s5, 0")
    e("s_and_b32 s11, s11, 0xffff")
    e("s_mov_b32 s26, 522368")
    e("s_mov_b32 s27, 0x20000")
    for j in range(8): issue_x(0, j)
    e("v_and_b32 v12, 3, v11")
    e("v_bfe_u32 v13, v11, 2, 1")
    e("v_lshrrev_b32 v14, 3, v11")
    e("v_lshlrev_b32 v14, 5, v14")
    e("v_lshl_add_u32 v14, v12, 3, v14")
    e("v_lshl_add_u32 v14, v13, 2, v14")
    e("v_lshl_or_b32 v12, v13, 2, v12")
    e("v_xor_b32 v12, v12, v9")
    e("v_lshlrev_b32 v12, 4, v12")
    e("v_lshl_add_u32 v5, v14, 7, v12")
    e(f"v_add_u32 v5, {WRING}, v5")
    e("v_xor_b32 v6, 64, v5")
    e("v_lshlrev_b32 v3, 4, v11")
    e(f"v_add_u32 v3, {STAB}, v3")
    e("v_lshlrev_b32 v4, 5, v9")
    e(f"v_add_u32 v4, {ATAB}, v4")
    stamp()
    e("s_barrier")
    TB = [16, 32]
    def tab_read(u):
        if u >= NT: return
        r = TB[u & 1]
        e(f"ds_read_b128 v[{r}:{r+3}], v3 offset:{u*512}");        S.issue("lgkm", ("T", u))
        e(f"ds_read_b128 v[{r+4}:{r+7}], v3 offset:{8192+u*512}"); S.issue("lgkm", ("T", u))
        e(f"ds_read_b128 v[{r+8}:{r+11}], v4 offset:{u*256}");     S.issue("lgkm", ("T", u))
        e(f"ds_read_b128 v[{r+12}:{r+15}], v4 offset:{u*256+16}"); S.issue("lgkm", ("T", u))
    TT = [48, 56]
    DD = [64, 68, 72, 76]
    budget = [int(x) for x in opt.budget.split(",")]
    nextX, nextQ = 1, 1
    tab_read(0)
    for t in range(-1, NT - 1):
        u = t + 1
        b = u % NQ
        S.c(f"producer iteration t={t} dequant u={u}")
        tb = TB[u & 1]
        bud = budget[min(t + 1, len(budget) - 1)]
        groups = []
        maxX = min(t + opt.dx, t + NX - 1, NT - 1)
        maxQ = min(u + NQ - 1, NT - 1)
        cand = []
        while bud > 0:
            cx = nextX if nextX <= maxX else None
            cq = nextQ if nextQ <= maxQ else None
            if cx is None and cq is None: break
            if cq is None or (cx is not None and cx <= cq - opt.qlead):
                groups.append(("x", nextX)); nextX += 1
            else:
                groups.append(("q", nextQ)); nextQ += 1
            bud -= 1
        if opt.xfirst:
            groups.sort(key=lambda g: (g[0] != "x", g[1]))
        vm = [(k, v, j) for (k, v) in groups for j in range(8)]
        S.c("loads: " + ", ".join(f"{k.upper()}({v})" for k, v in groups))
        nslots = 16
        def do_vm(n):
            for _ in range(n):
                if vm:
                    k, uu, j = vm.pop(0)
                    (issue_x if k == "x" else issue_q)(uu, j)
        pst = [0]
        def ps():
            if opt.pst is not None and t in (opt.pst, opt.pst + 1):
                idx = (t - opt.pst) * 7 + pst[0]
                if idx < 14: e(f"s_memtime s[{64+2*idx}:{65+2*idx}]")
                pst[0] += 1
        ps()
        extra = max(0, len(vm) - 16)
        do_vm(opt.burst + extra if len(vm) > 8 else 0)
        tab_read(u + 1)
        S.wait("lgkm", {("T", u)})
        S.wait("vm", {("Q", u)})
        ps()
        per = 1
        par = (u & 1) * 16384
        nleft = [len(vm)]
        slot = [0]
        total = len(vm)
        issued = [0]
        def slot_vm():
            slot[0] += 1
            target = (total * slot[0] + 15) // 16 if opt.spread else min(total, slot[0])
            n = target - issued[0]
            if n > 0:
                do_vm(n); issued[0] += n
        def wr(c):
            if opt.nodq or opt.nowr: return
            a = "v5" if c < 2 else "v6"
            e(f"ds_write_b128 {a}, v[{DD[c]}:{DD[c]+3}] offset:{par + c*128}")
            S.issue("lgkm", ("W", u))
        for c in range(4):
            T = TT[c & 1]
            if not opt.nodq:
                for j in range(8):
                    q = qb(b) + 4 * j + c
                    if opt.cvt:
                        e(f"v_cvt_f32_i32 v{T+j}, v{q}")
                    else:
                        e(f"v_fma_mix_f32 v{T+j}, v{q}, v{tb+c}, v{tb+4+c} op_sel_hi:[1,0,0]")
                    if j == 3: slot_vm()
                if opt.cvt:
                    for j in range(8):
                        e(f"v_fma_f32 v{T+j}, v{T+j}, v{tb+c}, v{tb+4+c}")
            else:
                slot_vm()
            slot_vm()
            if opt.wrpos == 1:
                if c == 2: wr(0)
                if c == 3: wr(2)
            if not opt.nodq:
                for j in range(8):
                    e(f"v_mul_f32 v{T+j}, v{T+j}, v{tb+8+j}")
            slot_vm()
            if opt.wrpos == 1 and c == 2: wr(1)
            if not opt.nodq:
                for i in range(4):
                    e(f"v_cvt_pk_bf16_f32 v{DD[c]+i}, v{T+2*i}, v{T+2*i+1}")
            if opt.wrpos == 0: wr(c)
            if opt.wrpos == 1 and c == 3: wr(3)
            if opt.wrpos == 2 and c == 3:
                for cc in range(4): wr(cc)
            slot_vm()
            if c in (1, 3): ps()
        do_vm(99)
        S.wait("vm", {("X", u)})
        ps()
        S.wait("lgkm", {("W", u)})
        ps()
        e("s_barrier")
        ps()
    assert nextX == NT and nextQ == NT, (nextX, nextQ)
    if opt.stamp:
        if opt.pst is None: stamp()
        stamp_store(e, 32, 62)
    S.lab("L_end")
    e("s_endpgm")

    hdr = HEADER + f"; @launch grid=({NWG},1,1) block=(512,1,1) lds={LDS}\n"
    pre = f""".amdgcn_target "amdgcn-amd-amdhsa--gfx950"
.text
.globl {KNAME}
.p2align 8
.type {KNAME},@function
{KNAME}:
"""
    post = f""".section .rodata,"a"
.p2align 6
.amdhsa_kernel {KNAME}
  .amdhsa_next_free_vgpr 256
  .amdhsa_next_free_sgpr 96
  .amdhsa_accum_offset 256
  .amdhsa_group_segment_fixed_size 0
  .amdhsa_kernarg_size 64
  .amdhsa_user_sgpr_count 2
  .amdhsa_user_sgpr_kernarg_segment_ptr 1
  .amdhsa_system_sgpr_workgroup_id_x 1
.end_amdhsa_kernel
"""
    return hdr + pre + "\n".join(S.L) + "\n" + post

def parse(argv=None):
    ap = argparse.ArgumentParser()
    ap.add_argument("-o", default="k.s")
    ap.add_argument("--stamp", type=int, default=0)
    for f in ("nomfma", "nodq", "nox", "noq", "noc", "noadv", "cvt", "nowr"):
        ap.add_argument("--" + f, action="store_true")
    ap.add_argument("--nx", type=int, default=3)
    ap.add_argument("--nq", type=int, default=4)
    ap.add_argument("--dx", type=int, default=2)
    ap.add_argument("--qlead", type=int, default=0)
    ap.add_argument("--budget", default="1,2,3,2")
    ap.add_argument("--xfirst", type=int, default=1)
    ap.add_argument("--spread", type=int, default=1)
    ap.add_argument("--cprio", type=int, default=3)
    ap.add_argument("--pprio", type=int, default=0)
    ap.add_argument("--rotn", type=int, default=8)
    ap.add_argument("--rm", type=int, default=2)
    ap.add_argument("--rn", type=int, default=1)
    ap.add_argument("--pst", type=int, default=None)
    ap.add_argument("--wrpos", type=int, default=1)
    ap.add_argument("--burst", type=int, default=2)
    ap.add_argument("--rpm", type=int, default=1)
    ap.add_argument("--morder", type=int, default=0)
    ap.add_argument("--stmod", default="nt")
    ap.add_argument("--qmod", default="")
    ap.add_argument("--xmod", default="")
    opt = ap.parse_args(argv)
    for k in ("stmod", "qmod", "xmod"):
        v = getattr(opt, k)
        if v: setattr(opt, k, " " + v)
    return opt

if __name__ == "__main__":
    opt = parse()
    open(opt.o, "w").write(gen(opt))
```

```python
import sys, argparse, re

KNAME = "standalone__weight_only_int_omniquant__prompt_kernel"
HEADER = """; Kernarg layout for this problem (64 bytes, ptrs only, base s[0:1]):
;
;   waves 0-3: MFMA consumers (128x64 each, v_mfma_f32_32x32x16_bf16, D = W'^T x^T)
"""
NT = 16

def isize(line):
    s = line.strip()
    if not s or s.startswith(";") or s.endswith(":") or s.startswith("."): return 0
    s = s.split(";")[0].strip()
    op = s.split()[0]
    args = s[len(op):]
    def has_lit():
        for tok in re.split(r"[,\s]+", args):
            tok = tok.strip()
            if not tok: continue
            if re.fullmatch(r"-?(0x[0-9a-fA-F]+|\d+)", tok):
                v = int(tok, 0)
                if v < -16 or v > 64: return True
            elif re.fullmatch(r"L_\w+-\w+", tok): return True
        return False
    if op.startswith(("ds_", "buffer_", "global_", "flat_", "s_load", "s_memtime", "s_memrealtime", "v_mfma", "v_pk_", "v_fma_mix")): return 8
    if op in ("s_waitcnt", "s_barrier", "s_nop", "s_endpgm", "s_setprio", "s_branch", "s_sleep") or op.startswith("s_cbranch"): return 4
    if op.startswith("s_"):
        if op in ("s_movk_i32", "s_addk_i32", "s_mulk_i32"): return 4
        return 8 if has_lit() else 4
    if op.startswith("v_"):
        vop3 = ("v_fma_f32", "v_cvt_pk_bf16_f32", "v_lshl_add_u32", "v_lshl_or_b32", "v_mul_lo_u32", "v_bfe_u32", "v_add3_u32", "v_perm_b32", "v_and_or_b32", "v_readlane_b32", "v_writelane_b32", "v_cmp_gt_u32")
        if op in vop3 or op.endswith("_e64"): return 8
        return 8 if has_lit() else 4
    raise ValueError(line)

class Stream:
    def __init__(self):
        self.L = []
        self.sites = {}
        self.emit = True
        self.maxn = {"vm": 63, "lgkm": 15}
        self.reset()
    def reset(self):
        self.q = {"vm": [], "lgkm": []}
    def e(self, s):
        if self.emit: self.L.append("    " + s)
    def lab(self, s):
        if self.emit: self.L.append(s + ":")
    def c(self, s):
        if self.emit: self.L.append("    ; " + s)
    def d(self, s):
        if self.emit: self.L.append(s)
    def issue(self, ctr, tag): self.q[ctr].append(tag)
    def wait(self, ctr, site, tags):
        q = self.q[ctr]
        last = -1
        for i, t in enumerate(q):
            if t in tags: last = i
        n = self.maxn[ctr] if last < 0 else min(len(q) - 1 - last, self.maxn[ctr])
        key = (ctr, site)
        self.sites[key] = min(self.sites.get(key, 99), n)
        if self.emit: self.L.append(("wait", key))
    def waitall(self, ctr):
        self.q[ctr] = []
        self.e(f"s_waitcnt {'vmcnt' if ctr=='vm' else 'lgkmcnt'}(0)")
    def resolve(self, align_regions=True):
        out = []
        for s in self.L:
            if isinstance(s, tuple):
                ctr, site = s[1]
                n = self.sites[s[1]]
                if n >= self.maxn[ctr]: continue
                out.append(f"    s_waitcnt {'vmcnt' if ctr=='vm' else 'lgkmcnt'}({n})")
            else:
                out.append(s)
        res = []
        off = 0
        on = False
        for s in out:
            t = s.strip()
            if t == "; ALIGN_ON": on = True
            if t == "; ALIGN_OFF": on = False
            if t.startswith(".p2align"):
                a = 1 << int(t.split()[1].rstrip(","))
                off = (off + a - 1) // a * a
                res.append(s); continue
            sz = isize(s)
            if on and sz == 8 and off % 8 == 4:
                res.append("    s_nop 0"); off += 4
            res.append(s); off += sz
        return res

def stamp_store(e, nst, first):
    e("s_waitcnt lgkmcnt(0)")
    e("s_lshl_b32 s56, s2, 11")
    e("s_lshl_b32 s57, s18, 8")
    e("s_add_u32 s56, s56, s57")
    e("s_add_u32 s58, s58, s56")
    e("s_addc_u32 s59, s59, 0")
    e("s_mov_b64 exec, 1")
    e("v_mov_b32 v24, 0")
    for i in range(nst):
        e(f"v_mov_b32 v16, s{first+i}")
        e(f"global_store_dword v24, v16, s[58:59] offset:{4*i}")

def gen(opt):
    NWG = 224
    NX = 3
    NQ = 4
    XRING = 0
    WRING = NX * 32768
    STAB = WRING + 32768
    ZTAB = STAB + 8192
    ATAB = ZTAB + 8192
    LDS = ATAB + 4096 + 512
    EPI = 32768
    S = Stream()
    e = S.e
    nstamp = [0]
    def stamp():
        if not opt.stamp: return
        e("s_memrealtime s[60:61]")
        e("s_waitcnt lgkmcnt(0)")
        e(f"s_mov_b32 s{62+nstamp[0]}, s60")
        nstamp[0] += 1
    RM = opt.rotn - 1
    e(f"s_cmp_ge_u32 s2, {NWG}")
    e("s_cbranch_scc1 L_end")
    if opt.stamp:
        e("s_memrealtime s[60:61]")
    e("s_load_dwordx8 s[4:11], s[0:1], 0")
    e("s_load_dwordx4 s[12:15], s[0:1], 32")
    if opt.stamp:
        e("s_load_dwordx2 s[58:59], s[0:1], 56")
    e("v_lshrrev_b32 v1, 6, v0")
    e("s_and_b32 s16, s2, 7")
    e("s_lshr_b32 s17, s2, 3")
    e("v_readfirstlane_b32 s18, v1")
    e("s_and_b32 s19, s16, 1")
    e("s_lshl_b32 s19, s19, 2")
    e("s_and_b32 s20, s17, 3")
    e("s_lshr_b32 s21, s17, 2")
    e(f"s_mul_i32 s93, s20, {opt.rm}")
    e("s_add_u32 s19, s19, s20")
    e("s_lshr_b32 s20, s16, 1")
    e("s_mul_i32 s20, s20, 7")
    e("s_add_u32 s20, s20, s21")
    e(f"s_mul_i32 s21, s21, {opt.rn}")
    e("s_add_u32 s93, s93, s21")
    e(f"s_and_b32 s93, s93, {RM}")
    e("v_and_b32 v7, 63, v0")
    e("s_cmp_ge_u32 s18, 4")
    e("s_cbranch_scc1 L_producer")

    S.c("consumer waves")
    e(f"s_setprio {opt.cprio}")
    e("v_lshrrev_b32 v12, 4, v0")
    e("v_and_b32 v13, 15, v0")
    e("v_mul_u32_u24 v14, 7168, v12")
    e("v_lshl_add_u32 v14, v13, 4, v14")
    e("v_lshlrev_b32 v15, 3, v0")
    e("s_lshl_b32 s23, s20, 8")
    e("s_sub_u32 s34, 114688, s23")
    e("s_mov_b32 s35, 0x20000")
    e("s_mov_b32 s38, s34")
    e("s_mov_b32 s39, 0x20000")
    e("s_mov_b32 s42, 2048")
    e("s_mov_b32 s43, 0x20000")
    e("s_waitcnt lgkmcnt(0)")
    e("s_add_u32 s32, s8, s23")
    e("s_addc_u32 s33, s9, 0")
    e("s_and_b32 s33, s33, 0xffff")
    e("s_add_u32 s36, s10, s23")
    e("s_addc_u32 s37, s11, 0")
    e("s_and_b32 s37, s37, 0xffff")
    e("s_mov_b32 s40, s12")
    e("s_and_b32 s41, s13, 0xffff")
    e("buffer_load_dwordx4 v[16:19], v14, s[32:35], 0 offen")
    e("buffer_load_dwordx4 v[20:23], v14, s[36:39], 0 offen")
    e("buffer_load_dwordx2 v[24:25], v15, s[40:43], 0 offen")
    e("v_lshrrev_b32 v8, 3, v7")
    e("s_lshl_b32 s23, s18, 6")
    e("v_add_u32 v8, s23, v8")
    e("v_lshrrev_b32 v9, 5, v7")
    e("v_lshrrev_b32 v10, 4, v7")
    e("v_xor_b32 v10, v9, v10")
    e("v_and_b32 v10, 1, v10")
    e("v_lshlrev_b32 v10, 2, v10")
    e("v_and_b32 v11, 7, v7")
    e("v_xor_b32 v10, v10, v11")
    e("v_lshlrev_b32 v10, 4, v10")
    e("v_lshl_add_u32 v112, v8, 11, v10")
    for jj in range(1, 4):
        e(f"v_xor_b32 v{112+jj}, {jj<<4}, v112")
    for j in range(1, 8):
        e(f"s_mov_b32 s{47+j}, {j*16384 - (j&3)*1024}")
    e("s_lshl_b32 s55, s18, 13")
    e("s_lshl_b32 s23, s19, 19")
    e("s_add_u32 s4, s4, s23")
    e("s_addc_u32 s5, s5, 0")
    e("s_and_b32 s5, s5, 0xffff")
    e("s_mov_b32 s10, 522368")
    e("s_mov_b32 s11, 0x20000")
    e("s_mov_b32 s6, 0")
    e("s_mov_b32 s7, 0")
    def cx_set():
        e("s_add_u32 m0, s55, s7")
        e("s_add_u32 s12, s93, s6")
        e(f"s_and_b32 s12, s12, {RM}")
        if RM != 15:
            e(f"s_and_b32 s13, s6, {15 - RM}")
            e("s_or_b32 s12, s12, s13")
        if opt.noadv: e("s_mov_b32 s12, 0")
        e("s_lshl_b32 s12, s12, 7")
        e("s_add_u32 s8, s4, s12")
        e("s_addc_u32 s9, s5, 0")
        e("s_add_u32 s6, s6, 1")
    def cx_issue(u, j):
        if j == 0: cx_set()
        if j == 4:
            e("s_add_u32 m0, m0, 0x1000")
            e("s_add_u32 s7, s7, 0x8000")
            e(f"s_cmp_eq_u32 s7, {NX*32768}")
            e("s_cselect_b32 s7, 0, s7")
        so = "0" if j == 0 else f"s{47+j}"
        if not opt.nox:
            e(f"buffer_load_dwordx4 v{112+(j&3)}, s[8:11], {so} offen offset:{(j&3)*1024}{opt.xmod} lds")
            S.issue("vm", ("X", u))
    for j in range(8): cx_issue(0, j)
    if opt.stamp:
        e("s_mov_b32 s62, s60")
        nstamp[0] = 1
    e("s_and_b32 s21, s18, 1")
    e("s_lshr_b32 s22, s18, 1")
    e("v_and_b32 v10, 31, v7")
    e("v_lshrrev_b32 v11, 5, v7")
    e("v_lshrrev_b32 v2, 3, v10")
    e("v_lshrrev_b32 v3, 2, v10")
    e("v_lshrrev_b32 v4, 1, v10")
    e("v_xor_b32 v3, v3, v4")
    e("v_and_b32 v3, 1, v3")
    e("v_lshl_or_b32 v2, v3, 2, v2")
    e("v_xor_b32 v2, v2, v11")
    e("v_lshlrev_b32 v2, 4, v2")
    e("v_lshl_add_u32 v9, v10, 7, v2")
    e("s_lshl_b32 s23, s21, 14")
    e("s_lshl_b32 s24, s22, 13")
    e(f"s_add_u32 s24, s24, {WRING}")
    XA = [2, 3, 4, 5]
    WA = [64, 65, 66, 67]
    for ks in range(4):
        e(f"v_xor_b32 v8, {ks*32}, v9")
        e(f"v_add_u32 v{XA[ks]}, s23, v8")
        e(f"v_add_u32 v{WA[ks]}, s24, v8")
    for r in range(128, 256):
        e(f"v_mov_b32 v{r}, 0")
    e("s_mov_b32 s31, 0xffff0000")
    e("s_mov_b32 s30, 0x4b800000")
    e("v_subrev_u32 v74, s93, v12")
    e(f"v_and_b32 v74, {RM}, v74")
    if RM != 15:
        e(f"v_and_b32 v75, {15 - RM}, v12")
        e("v_or_b32 v74, v74, v75")
    e("v_lshlrev_b32 v72, 9, v74")
    e("v_lshl_add_u32 v72, v13, 5, v72")
    e(f"v_add_u32 v72, {STAB}, v72")
    e("v_lshlrev_b32 v73, 8, v74")
    e("v_lshl_add_u32 v73, v13, 4, v73")
    e(f"v_add_u32 v73, {ATAB}, v73")
    e("s_waitcnt vmcnt(%d)" % (0 if opt.nox else 8))
    for d in range(4):
        e(f"v_lshlrev_b32 v{80+2*d}, 16, v{16+d}")
        e(f"v_and_b32 v{81+2*d}, s31, v{16+d}")
        e(f"v_lshlrev_b32 v{88+2*d}, 16, v{20+d}")
        e(f"v_and_b32 v{89+2*d}, s31, v{20+d}")
    for d in range(8):
        e(f"v_mul_f32_e64 v{88+d}, -v{88+d}, v{80+d}")
    for d in range(8):
        e(f"v_mul_f32 v{80+d}, s30, v{80+d}")
    for d in range(2):
        e(f"v_lshlrev_b32 v{96+2*d}, 16, v{24+d}")
        e(f"v_and_b32 v{97+2*d}, s31, v{24+d}")
    e("ds_write_b128 v72, v[80:83]")
    e("ds_write_b128 v72, v[84:87] offset:16")
    e("ds_write_b128 v72, v[88:91] offset:8192")
    e("ds_write_b128 v72, v[92:95] offset:8208")
    e("ds_write_b128 v73, v[96:99]")
    e("s_lshl_b32 s25, s19, 8")
    e("s_lshl_b32 s26, s21, 7")
    e("s_add_u32 s25, s25, s26")
    e("s_mul_i32 s25, s25, 7168")
    e("s_lshl_b32 s26, s20, 8")
    e("s_lshl_b32 s27, s22, 7")
    e("s_add_u32 s26, s26, s27")
    e("s_add_u32 s25, s25, s26")
    e("s_add_u32 s40, s14, s25")
    e("s_addc_u32 s41, s15, 0")
    e("s_and_b32 s41, s41, 0xffff")
    e("s_sub_u32 s42, 14680064, s25")
    e("s_mov_b32 s43, 0x20000")
    e("v_and_b32 v12, 7, v10")
    e("v_lshlrev_b32 v13, 1, v11")
    e("v_xor_b32 v12, v12, v13")
    e("v_lshlrev_b32 v12, 4, v12")
    e("v_lshl_add_u32 v12, v10, 7, v12")
    e("s_lshl_b32 s26, s18, 14")
    e(f"s_add_u32 s26, s26, {EPI}")
    e("v_add_u32 v12, s26, v12")
    EW = [72, 73, 74, 75]
    e("s_waitcnt lgkmcnt(0)")
    for tn in range(2):
        for q in range(2):
            e(f"v_xor_b32 v{EW[tn*2+q]}, {(4*tn+q)<<4}, v12")
    e("v_lshrrev_b32 v13, 3, v7")
    e("v_and_b32 v14, 7, v7")
    e("v_xor_b32 v15, v14, v13")
    e("v_lshlrev_b32 v15, 4, v15")
    e("v_lshl_add_u32 v15, v13, 7, v15")
    e("v_add_u32 v76, s26, v15")
    e("v_mul_u32_u24 v77, 7168, v13")
    e("v_lshl_add_u32 v77, v14, 4, v77")
    e("s_mov_b32 s28, 0")
    e("s_mov_b32 s29, 0")
    e("s_mov_b32 s44, 0x8000")
    e("s_mov_b32 s45, 0xffff0000")
    e("s_barrier")
    stamp()
    for j in range(8): cx_issue(1, j)
    F = [dict(x=[16, 20, 24, 28], w=[32, 36]), dict(x=[40, 44, 48, 52], w=[56, 60])]
    def acc(tn, tm):
        b = 128 + (tn * 4 + tm) * 16
        return f"v[{b}:{b+15}]"
    def rd(buf, kind, idx, t, ks):
        if opt.noc: return
        if kind == "x":
            r = F[buf]["x"][idx]
            e(f"ds_read_b128 v[{r}:{r+3}], v{XA[ks]} offset:{idx*4096}")
        else:
            r = F[buf]["w"][idx]; off = idx * 4096 + (t & 1) * 16384
            e(f"ds_read_b128 v[{r}:{r+3}], v{WA[ks]} offset:{off}")
        S.issue("lgkm", (t, ks, kind, idx))
    order = [("w", 0), ("x", 0), ("x", 1), ("x", 2), ("x", 3), ("w", 1)]
    def phase(mf, rdspec, site, tm_major=False, after=None, xd=None):
        if tm_major: mfs = [(tn, tm) for tm in range(4) for tn in range(2)]
        else: mfs = [(tn, tm) for tn in range(2) for tm in range(4)]
        reads = list(order) if rdspec else []
        ri = 0
        for mi, (tn, tm) in enumerate(mfs):
            for _ in range(opt.rpm):
                if ri < len(reads):
                    kind, idx = reads[ri]; ri += 1
                    rd(rdspec[2], kind, idx, rdspec[0], rdspec[1])
            t, ks, buf = mf
            if mi <= 4: S.wait("lgkm", (site, mi), {(t, ks, "w", tn), (t, ks, "x", tm)})
            if not opt.nomfma:
                xr = F[buf]["x"][tm]; wr = F[buf]["w"][tn]
                e(f"v_mfma_f32_32x32x16_bf16 {acc(tn,tm)}, v[{wr}:{wr+3}], v[{xr}:{xr+3}], {acc(tn,tm)}")
            if after and mi == 6: after()
            if xd and mi in xd[1]:
                if xd[2]: cx_issue(xd[0], xd[2].pop(0))
    def advance_stage():
        e("s_cmp_eq_u32 s29, 2")
        e("s_cselect_b32 s46, s45, s44")
        e("s_cselect_b32 s47, -1, s29")
        e("s_add_u32 s29, s47, 1")
        for ks in range(4):
            e(f"v_add_u32 v{XA[ks]}, s46, v{XA[ks]}")
    e("s_waitcnt vmcnt(%d)" % (0 if opt.nox else 8))
    e("s_barrier")
    if opt.stamp:
        e("s_memtime s[88:89]")
        stamp()
        e("s_mov_b32 s86, s88")
    for kind, idx in order: rd(0, kind, idx, 0, 0)
    _q = list(S.q["vm"])
    n0 = len(opt.xpos.split(",")) if "0" in opt.xph.split(",") else 0
    for jj in range(n0): cx_issue(2, jj)
    S.q["vm"] = _q
    e("s_branch L_cB0")
    S.d(".p2align 6")
    S.lab("L_cloop")
    S.emit = True
    saveL = S.L
    body = {}
    xpos = [int(v) for v in opt.xpos.split(",")]
    for t in range(NT):
        par = t & 1
        tail = t >= NT - 2
        site0 = ("tail", par) if tail else par
        S.L = []
        S.emit = True
        js = list(range(8))
        xd = None if tail else (t + 2, xpos, js)
        xph = [int(v) for v in opt.xph.split(",")]
        def xdp(p): return xd if p in xph else None
        if t == 0:
            pass
        if t > 0:
            S.wait("vm", ("X", site0), {("X", t)})
            S.waitall("lgkm")
            e("s_barrier")
            phase((t-1, 3, 1), (t, 0, 0), (site0, 0), xd=xdp(0))
        else:
            saveL_extra = []
        if par == 0 and not tail: S.lab("L_cB0")
        if t == 0:
            for _ in range(n0):
                js.pop(0); S.issue("vm", ("X", 2))
        phase((t, 0, 0), (t, 1, 1), (site0, 1), xd=xdp(1))
        phase((t, 1, 1), (t, 2, 0), (site0, 2), xd=xdp(2))
        phase((t, 2, 0), (t, 3, 1), (site0, 3), after=advance_stage, xd=xdp(3))
        if par == 1 and not tail:
            e("s_add_u32 s28, s28, 1")
            e(f"s_cmp_lt_u32 s28, {NT//2 - 1}")
            e("s_cbranch_scc1 L_cloop")
        if t in (2, 3, NT - 2, NT - 1): body[t] = S.L
    S.L = saveL + body[2] + body[3] + body[NT - 2] + body[NT - 1]
    S.waitall("lgkm")
    phase((NT-1, 3, 1), None, ("fin", 0), tm_major=True)
    if opt.stamp:
        e("s_memtime s[88:89]")
        nstamp[0] = 20
        stamp()
        e("s_mov_b32 s87, s88")
    S.c("epilogue")
    S.reset()
    T = 80
    R = 16
    e("s_mov_b32 s27, 0")
    sidx = [0]
    def store(it):
        rr = R + (it % 8) * 4
        S.wait("lgkm", ("st", it), {("R", it)})
        e(f"buffer_store_dwordx4 v[{rr}:{rr+3}], v77, s[40:43], s27 offen{opt.stmod}")
        e(f"s_add_u32 s27, s27, 57344")
    if opt.stamp: e("s_nop 7")
    for tm in range(4):
        for tn in range(2):
            b = 128 + (tn * 4 + tm) * 16
            tb = T + ((tm * 2 + tn) % 4) * 8
            if tm == 3 and tn == 0 and not opt.stamp: e("s_nop 3")
            for d in range(8):
                e(f"v_cvt_pk_bf16_f32 v{tb+d}, v{b+2*d}, v{b+2*d+1}")
            for q in range(2):
                e(f"ds_write_b128 v{EW[tn*2+q]}, v[{tb+4*q}:{tb+4*q+3}] offset:{tm*4096}")
                S.issue("lgkm", ("EWr", tm))
            if tm > 0:
                store((tm - 1) * 4 + tn * 2); store((tm - 1) * 4 + tn * 2 + 1)
        for k in range(4):
            it = tm * 4 + k
            r = R + (it % 8) * 4
            e(f"ds_read_b128 v[{r}:{r+3}], v76 offset:{it*1024}")
            S.issue("lgkm", ("R", it))
    for it in range(12, 16): store(it)
    if opt.stamp:
        stamp()
        e("s_waitcnt vmcnt(0)")
        stamp()
        stamp_store(e, 26, 62)
    e("s_endpgm")

    S.reset()
    S.lab("L_producer")
    nstamp[0] = 0
    e("s_sub_u32 s21, s18, 4")
    if opt.pprio: e(f"s_setprio {opt.pprio}")
    e("v_lshrrev_b32 v9, 5, v7")
    e("v_and_b32 v11, 31, v7")
    e("s_lshl_b32 s22, s21, 1")
    e("v_add_u32 v9, s22, v9")
    e("v_mul_u32_u24 v2, 114688, v9")
    e("v_lshl_add_u32 v2, v11, 4, v2")
    for j in range(1, 8):
        e(f"s_mov_b32 s{43+j}, {j*14336}")
    e("s_mov_b32 s30, 903680")
    e("s_mov_b32 s31, 0x20000")
    e("s_lshl_b32 s22, s20, 9")
    e("s_waitcnt lgkmcnt(0)")
    e("s_mov_b32 s14, 0")
    e("s_mov_b32 s15, 0")
    e("s_add_u32 s8, s6, s22")
    e("s_addc_u32 s9, s7, 0")
    e("s_and_b32 s9, s9, 0xffff")
    def set_k(which):
        cnt = "s14" if which == "q" else "s15"
        e(f"s_add_u32 s12, s93, {cnt}")
        e(f"s_and_b32 s12, s12, {RM}")
        if RM != 15:
            e(f"s_and_b32 s13, {cnt}, {15 - RM}")
            e("s_or_b32 s12, s12, s13")
        if opt.noadv: e("s_mov_b32 s12, 0")
        if which == "q":
            e("s_mul_i32 s12, s12, 917504")
            e("s_add_u32 s28, s8, s12")
            e("s_addc_u32 s29, s9, 0")
        else:
            e("s_lshl_b32 s12, s12, 7")
            e("s_add_u32 s24, s10, s12")
            e("s_addc_u32 s25, s11, 0")
        e(f"s_add_u32 {cnt}, {cnt}, 1")
    def qb(b): return 256 - 32 * NQ + 32 * b
    def issue_x(u, j):
        if j == 0:
            e("s_add_u32 m0, s23, s33")
            set_k("x")
        if j == 4:
            e("s_add_u32 m0, m0, 0x1000")
            e(f"s_add_u32 s33, s33, 0x8000")
            e(f"s_cmp_eq_u32 s33, {NX*32768}")
            e("s_cselect_b32 s33, 0, s33")
        so = "0" if j == 0 else f"s{50+j}"
        if not opt.nox:
            off = (j & 3) * 1024
            e(f"buffer_load_dwordx4 v{80+(j&3)}, s[24:27], {so} offen offset:{off}{opt.xmod} lds")
            S.issue("vm", ("X", u))
    def issue_q(u, j):
        b = u % NQ
        if j == 0: set_k("q")
        r = qb(b) + 4 * j
        so = "0" if j == 0 else f"s{43+j}"
        if not opt.noq:
            e(f"buffer_load_dwordx4 v[{r}:{r+3}], v2, s[28:31], {so} offen{opt.qmod}")
            S.issue("vm", ("Q", u))
    for j in range(8): issue_q(0, j)
    if opt.stamp:
        e("s_mov_b32 s62, s60")
        nstamp[0] = 1
    e("v_and_b32 v12, 3, v11")
    e("v_bfe_u32 v13, v11, 2, 1")
    e("v_lshrrev_b32 v14, 3, v11")
    e("v_lshlrev_b32 v14, 5, v14")
    e("v_lshl_add_u32 v14, v12, 3, v14")
    e("v_lshl_add_u32 v14, v13, 2, v14")
    e("v_lshl_or_b32 v12, v13, 2, v12")
    e("v_xor_b32 v12, v12, v9")
    e("v_lshlrev_b32 v12, 4, v12")
    e("v_lshl_add_u32 v5, v14, 7, v12")
    e(f"v_add_u32 v5, {WRING}, v5")
    e("v_xor_b32 v6, 64, v5")
    e("v_lshlrev_b32 v3, 4, v11")
    e(f"v_add_u32 v3, {STAB}, v3")
    e("v_lshlrev_b32 v4, 5, v9")
    e(f"v_add_u32 v4, {ATAB}, v4")
    e("s_mov_b32 s92, 0")
    stamp()
    e("s_barrier")
    nx0 = 0
    nq0 = 1
    for g in opt.pro.split(","):
        if g == "q":
            for j in range(8): issue_q(nq0, j)
            nq0 += 1
    TB = [16, 32]
    def tab_read(u):
        r = TB[u & 1]
        e(f"ds_read_b128 v[{r}:{r+3}], v3");                S.issue("lgkm", ("T", u))
        e(f"ds_read_b128 v[{r+4}:{r+7}], v3 offset:8192");  S.issue("lgkm", ("T", u))
        e(f"ds_read_b128 v[{r+8}:{r+11}], v4");             S.issue("lgkm", ("T", u))
        e(f"ds_read_b128 v[{r+12}:{r+15}], v4 offset:16");  S.issue("lgkm", ("T", u))
        e("v_add_u32 v3, 512, v3")
        e("v_add_u32 v4, 256, v4")
    TT = [48, 56]
    DD = [64, 68, 72, 76]
    tab_read(0)
    S.c("ALIGN_ON") if opt.align else None
    ramp = [int(v) for v in opt.ramp.split(",")]
    NH = len(ramp)
    depth = nq0 + sum(ramp) - NH
    NLOOP = NT - depth
    assert (NLOOP - NH) % 4 == 0 and depth <= NQ - 1, (NLOOP, NH, depth)
    nextq = nq0
    for t in range(-1, NT - 1):
        u = t + 1
        b = u % NQ
        tail = u >= NLOOP
        head = u < NH
        S.emit = head or (u < NH + 4) or tail
        if u == NH:
            S.d(".p2align 6")
            S.lab("L_ploop")
        site = ("tail", u) if tail else (("head", u) if head else b)
        S.c(f"producer iteration u%4={b}" + (" (tail)" if tail else " (head)" if head else ""))
        ng = ramp[u] if head else (0 if tail else 1)
        qlist = list(range(nextq, nextq + ng)); nextq += ng
        tb = TB[u & 1]
        vm = [("q", qq, j) for qq in qlist for j in range(8)]
        def do_vm(n):
            for _ in range(n):
                if vm:
                    k, uu, j = vm.pop(0)
                    (issue_x if k == "x" else issue_q)(uu, j)
        if opt.stamp >= 2: e("s_memtime s[60:61]")
        do_vm(opt.burst)
        if u + 1 < NT: tab_read(u + 1)
        S.wait("lgkm", ("T", site), {("T", u)})
        S.wait("vm", ("Q", site), {("Q", u)})
        par = (u & 1) * 16384
        total = len(vm)
        slot = [0]; issued = [0]
        nsl = opt.nsl
        def slot_vm():
            slot[0] += 1
            k = slot[0] - opt.qs0
            target = 0 if k <= 0 else min(total, (total * k + nsl - 1) // nsl)
            n = target - issued[0]
            if n > 0:
                do_vm(n); issued[0] += n
        def wr(c):
            if opt.nodq or opt.nowr: return
            a = "v5" if c < 2 else "v6"
            e(f"ds_write_b128 {a}, v[{DD[c]}:{DD[c]+3}] offset:{par + c*128}")
            S.issue("lgkm", ("W", u))
        for c in range(4):
            T = TT[c & 1]
            if not opt.nodq:
                for j in range(8):
                    q = qb(b) + 4 * j + c
                    e(f"v_fma_mix_f32 v{T+j}, v{q}, v{tb+c}, v{tb+4+c} op_sel_hi:[1,0,0]")
                    if j == 3: slot_vm()
            else:
                slot_vm()
            slot_vm()
            if opt.wrpos == 1:
                if c == 2: wr(0)
                if c == 3: wr(2)
            if not opt.nodq:
                for j in range(8):
                    e(f"v_mul_f32_e64 v{T+j}, v{T+j}, v{tb+8+j}")
            slot_vm()
            if opt.wrpos == 1 and c == 2: wr(1)
            if not opt.nodq:
                for i in range(4):
                    e(f"v_cvt_pk_bf16_f32 v{DD[c]+i}, v{T+2*i}, v{T+2*i+1}")
            if opt.wrpos == 0: wr(c)
            if opt.wrpos == 1 and c == 3: wr(3)
            if opt.wrpos == 2 and c == 3:
                for cc in range(4): wr(cc)
            slot_vm()
        do_vm(99)
        S.wait("lgkm", ("W", site), {("W", u)})
        if opt.stamp >= 2:
            e("s_waitcnt lgkmcnt(0)")
            e("s_mov_b32 m0, s92"); e("s_nop 0"); e("v_writelane_b32 v100, s60, m0")
            e("s_add_u32 s92, s92, 1")
        e("s_barrier")
        if not tail and not head and (u - NH) % 4 == 3:
            e(f"s_cmp_lt_u32 s14, {NT}")
            e("s_cbranch_scc1 L_ploop")
    S.emit = True
    S.c("ALIGN_OFF")
    if opt.stamp:
        if opt.stamp >= 2:
            e("s_memtime s[60:61]")
            e("s_waitcnt lgkmcnt(0)")
            e("s_mov_b32 m0, s92"); e("s_nop 0"); e("v_writelane_b32 v100, s60, m0")
            e("s_lshl_b32 s56, s2, 11")
            e("s_lshl_b32 s57, s18, 8")
            e("s_add_u32 s56, s56, s57")
            e("s_add_u32 s56, s56, 128")
            e("s_add_u32 s56, s58, s56")
            e("s_addc_u32 s57, s59, 0")
            e("v_lshlrev_b32 v101, 2, v7")
            e("v_cmp_gt_u32 vcc, 32, v7")
            e("s_and_saveexec_b64 s[44:45], vcc")
            e("global_store_dword v101, v100, s[56:57]")
            e("s_mov_b64 exec, s[44:45]")
        stamp()
        stamp_store(e, 8, 62)
    S.lab("L_end")
    e("s_endpgm")

    hdr = HEADER + f"; @launch grid=({NWG},1,1) block=(512,1,1) lds={LDS}\n"
    pre = f""".amdgcn_target "amdgcn-amd-amdhsa--gfx950"
.text
.globl {KNAME}
.p2align 8
.type {KNAME},@function
{KNAME}:
"""
    post = f""".section .rodata,"a"
.p2align 6
.amdhsa_kernel {KNAME}
  .amdhsa_next_free_vgpr 256
  .amdhsa_next_free_sgpr 96
  .amdhsa_accum_offset 256
  .amdhsa_group_segment_fixed_size 0
  .amdhsa_kernarg_size 64
  .amdhsa_user_sgpr_count 2
  .amdhsa_user_sgpr_kernarg_segment_ptr 1
  .amdhsa_system_sgpr_workgroup_id_x 1
.end_amdhsa_kernel
"""
    return hdr + pre + "\n".join(S.resolve()) + "\n" + post

def parse(argv=None):
    ap = argparse.ArgumentParser()
    ap.add_argument("-o", default="k.s")
    ap.add_argument("--stamp", type=int, default=0)
    for f in ("nomfma", "nodq", "nox", "noq", "noc", "noadv", "nowr"):
        ap.add_argument("--" + f, action="store_true")
    ap.add_argument("--xpos", default="6,7")
    ap.add_argument("--nsl", type=int, default=16)
    ap.add_argument("--qs0", type=int, default=0)
    ap.add_argument("--xph", default="0,1,2,3")
    ap.add_argument("--ramp", default="1,2")
    ap.add_argument("--pro", default="")
    ap.add_argument("--align", type=int, default=1)
    ap.add_argument("--cprio", type=int, default=3)
    ap.add_argument("--pprio", type=int, default=0)
    ap.add_argument("--rotn", type=int, default=8)
    ap.add_argument("--rm", type=int, default=2)
    ap.add_argument("--rn", type=int, default=1)
    ap.add_argument("--wrpos", type=int, default=0)
    ap.add_argument("--burst", type=int, default=0)
    ap.add_argument("--rpm", type=int, default=1)
    ap.add_argument("--stmod", default="nt")
    ap.add_argument("--qmod", default="")
    ap.add_argument("--xmod", default="")
    opt = ap.parse_args(argv)
    for k in ("stmod", "qmod", "xmod"):
        v = getattr(opt, k)
        if v: setattr(opt, k, " " + v)
    return opt

if __name__ == "__main__":
    opt = parse()
    open(opt.o, "w").write(gen(opt))
```

```python
import sys, argparse, re

KNAME = "standalone__weight_only_int_omniquant__prompt_kernel"
HEADER = """; Kernarg layout for this problem (64 bytes, ptrs only, base s[0:1]):
;
;   waves 0-3: MFMA consumers (128x64 each, v_mfma_f32_32x32x16_bf16, D = W'^T x^T)
"""
NT = 16

def isize(line):
    s = line.strip()
    if not s or s.startswith(";") or s.endswith(":") or s.startswith("."): return 0
    s = s.split(";")[0].strip()
    op = s.split()[0]
    args = s[len(op):]
    def has_lit():
        for tok in re.split(r"[,\s]+", args):
            tok = tok.strip()
            if not tok: continue
            if re.fullmatch(r"-?(0x[0-9a-fA-F]+|\d+)", tok):
                v = int(tok, 0)
                if v < -16 or v > 64: return True
            elif re.fullmatch(r"L_\w+-\w+", tok): return True
        return False
    if op.startswith(("ds_", "buffer_", "global_", "flat_", "s_load", "s_memtime", "s_memrealtime", "v_mfma", "v_pk_", "v_fma_mix")): return 8
    if op in ("s_waitcnt", "s_barrier", "s_nop", "s_endpgm", "s_setprio", "s_branch", "s_sleep") or op.startswith("s_cbranch"): return 4
    if op.startswith("s_"):
        if op in ("s_movk_i32", "s_addk_i32", "s_mulk_i32"): return 4
        return 8 if has_lit() else 4
    if op.startswith("v_"):
        vop3 = ("v_fma_f32", "v_cvt_pk_bf16_f32", "v_lshl_add_u32", "v_lshl_or_b32", "v_mul_lo_u32", "v_bfe_u32", "v_add3_u32", "v_perm_b32", "v_and_or_b32", "v_readlane_b32", "v_writelane_b32", "v_cmp_gt_u32")
        if op in vop3 or op.endswith("_e64"): return 8
        return 8 if has_lit() else 4
    raise ValueError(line)

class Stream:
    def __init__(self):
        self.L = []
        self.sites = {}
        self.emit = True
        self.maxn = {"vm": 63, "lgkm": 15}
        self.reset()
    def reset(self):
        self.q = {"vm": [], "lgkm": []}
    def e(self, s):
        if self.emit: self.L.append("    " + s)
    def lab(self, s):
        if self.emit: self.L.append(s + ":")
    def c(self, s):
        if self.emit: self.L.append("    ; " + s)
    def d(self, s):
        if self.emit: self.L.append(s)
    def issue(self, ctr, tag): self.q[ctr].append(tag)
    def wait(self, ctr, site, tags):
        q = self.q[ctr]
        last = -1
        for i, t in enumerate(q):
            if t in tags: last = i
        n = self.maxn[ctr] if last < 0 else min(len(q) - 1 - last, self.maxn[ctr])
        key = (ctr, site)
        self.sites[key] = min(self.sites.get(key, 99), n)
        if self.emit: self.L.append(("wait", key))
    def waitall(self, ctr):
        self.q[ctr] = []
        self.e(f"s_waitcnt {'vmcnt' if ctr=='vm' else 'lgkmcnt'}(0)")
    def resolve(self, align_regions=True):
        out = []
        for s in self.L:
            if isinstance(s, tuple):
                ctr, site = s[1]
                n = self.sites[s[1]]
                if n >= self.maxn[ctr]: continue
                out.append(f"    s_waitcnt {'vmcnt' if ctr=='vm' else 'lgkmcnt'}({n})")
            else:
                out.append(s)
        res = []
        off = 0
        on = False
        for s in out:
            t = s.strip()
            if t == "; ALIGN_ON": on = True
            if t == "; ALIGN_OFF": on = False
            if t.startswith(".p2align"):
                a = 1 << int(t.split()[1].rstrip(","))
                off = (off + a - 1) // a * a
                res.append(s); continue
            sz = isize(s)
            if on and sz == 8 and off % 8 == 4:
                res.append("    s_nop 0"); off += 4
            res.append(s); off += sz
        return res

def stamp_store(e, nst, first):
    e("s_waitcnt lgkmcnt(0)")
    e("s_lshl_b32 s56, s2, 11")
    e("s_lshl_b32 s57, s18, 8")
    e("s_add_u32 s56, s56, s57")
    e("s_add_u32 s58, s58, s56")
    e("s_addc_u32 s59, s59, 0")
    e("s_mov_b64 exec, 1")
    e("v_mov_b32 v24, 0")
    for i in range(nst):
        e(f"v_mov_b32 v16, s{first+i}")
        e(f"global_store_dword v24, v16, s[58:59] offset:{4*i}")

def gen(opt):
    NWG = 224
    NX = 3
    NQ = 4
    XRING = 0
    WRING = NX * 32768
    STAB = WRING + 32768
    ZTAB = STAB + 8192
    ATAB = ZTAB + 8192
    LDS = ATAB + 4096 + 512
    EPI = 32768
    S = Stream()
    e = S.e
    nstamp = [0]
    def stamp():
        if not opt.stamp: return
        e("s_memrealtime s[60:61]")
        e("s_waitcnt lgkmcnt(0)")
        e(f"s_mov_b32 s{62+nstamp[0]}, s60")
        nstamp[0] += 1
    RM = opt.rotn - 1
    NPF = 32 if opt.pf else 0
    e(f"s_cmp_ge_u32 s2, {NWG + NPF}")
    e("s_cbranch_scc1 L_end")
    if NPF:
        e(f"s_cmp_ge_u32 s2, {NWG}")
        e("s_cbranch_scc1 L_prefetch")
    if opt.stamp:
        e("s_memrealtime s[60:61]")
    e("s_load_dwordx8 s[4:11], s[0:1], 0")
    e("s_load_dwordx4 s[12:15], s[0:1], 32")
    if opt.stamp:
        e("s_load_dwordx2 s[58:59], s[0:1], 56")
    e("v_lshrrev_b32 v1, 6, v0")
    e("s_and_b32 s16, s2, 7")
    e("s_lshr_b32 s17, s2, 3")
    e("v_readfirstlane_b32 s18, v1")
    e("s_and_b32 s19, s16, 1")
    e("s_lshl_b32 s19, s19, 2")
    e("s_and_b32 s20, s17, 3")
    e("s_lshr_b32 s21, s17, 2")
    e(f"s_mul_i32 s93, s20, {opt.rm}")
    e("s_add_u32 s19, s19, s20")
    e("s_lshr_b32 s20, s16, 1")
    e("s_mul_i32 s20, s20, 7")
    e("s_add_u32 s20, s20, s21")
    e(f"s_mul_i32 s21, s21, {opt.rn}")
    e("s_add_u32 s93, s93, s21")
    e(f"s_and_b32 s93, s93, {RM}")
    e("v_and_b32 v7, 63, v0")
    e("s_cmp_ge_u32 s18, 4")
    e("s_cbranch_scc1 L_producer")

    S.c("consumer waves")
    e(f"s_setprio {opt.cprio}")
    e("v_lshrrev_b32 v12, 4, v0")
    e("v_and_b32 v13, 15, v0")
    e("v_mul_u32_u24 v14, 7168, v12")
    e("v_lshl_add_u32 v14, v13, 4, v14")
    e("v_lshlrev_b32 v15, 3, v0")
    e("s_lshl_b32 s23, s20, 8")
    e("s_sub_u32 s34, 114688, s23")
    e("s_mov_b32 s35, 0x20000")
    e("s_mov_b32 s38, s34")
    e("s_mov_b32 s39, 0x20000")
    e("s_mov_b32 s42, 2048")
    e("s_mov_b32 s43, 0x20000")
    e("s_waitcnt lgkmcnt(0)")
    e("s_add_u32 s32, s8, s23")
    e("s_addc_u32 s33, s9, 0")
    e("s_and_b32 s33, s33, 0xffff")
    e("s_add_u32 s36, s10, s23")
    e("s_addc_u32 s37, s11, 0")
    e("s_and_b32 s37, s37, 0xffff")
    e("s_mov_b32 s40, s12")
    e("s_and_b32 s41, s13, 0xffff")
    e("buffer_load_dwordx4 v[16:19], v14, s[32:35], 0 offen")
    e("buffer_load_dwordx4 v[20:23], v14, s[36:39], 0 offen")
    e("buffer_load_dwordx2 v[24:25], v15, s[40:43], 0 offen")
    e("v_lshrrev_b32 v8, 3, v7")
    e("s_lshl_b32 s23, s18, 6")
    e("v_add_u32 v8, s23, v8")
    e("v_lshrrev_b32 v9, 5, v7")
    e("v_lshrrev_b32 v10, 4, v7")
    e("v_xor_b32 v10, v9, v10")
    e("v_and_b32 v10, 1, v10")
    e("v_lshlrev_b32 v10, 2, v10")
    e("v_and_b32 v11, 7, v7")
    e("v_xor_b32 v10, v10, v11")
    e("v_lshlrev_b32 v10, 4, v10")
    e("v_lshl_add_u32 v112, v8, 11, v10")
    for jj in range(1, 4):
        e(f"v_xor_b32 v{112+jj}, {jj<<4}, v112")
    for j in range(1, 8):
        e(f"s_mov_b32 s{47+j}, {j*16384 - (j&3)*1024}")
    e("s_lshl_b32 s55, s18, 13")
    e("s_lshl_b32 s23, s19, 19")
    e("s_add_u32 s4, s4, s23")
    e("s_addc_u32 s5, s5, 0")
    e("s_and_b32 s5, s5, 0xffff")
    e("s_mov_b32 s10, 522368")
    e("s_mov_b32 s11, 0x20000")
    e("s_mov_b32 s6, 0")
    e("s_mov_b32 s7, 0")
    def cx_set():
        e("s_add_u32 m0, s55, s7")
        e("s_add_u32 s12, s93, s6")
        e(f"s_and_b32 s12, s12, {RM}")
        if RM != 15:
            e(f"s_and_b32 s13, s6, {15 - RM}")
            e("s_or_b32 s12, s12, s13")
        if opt.noadv: e("s_mov_b32 s12, 0")
        e("s_lshl_b32 s12, s12, 7")
        e("s_add_u32 s8, s4, s12")
        e("s_addc_u32 s9, s5, 0")
        e("s_add_u32 s6, s6, 1")
    def cx_issue(u, j):
        if j == 0: cx_set()
        if j == 4:
            e("s_add_u32 m0, m0, 0x1000")
            e("s_add_u32 s7, s7, 0x8000")
            e(f"s_cmp_eq_u32 s7, {NX*32768}")
            e("s_cselect_b32 s7, 0, s7")
        so = "0" if j == 0 else f"s{47+j}"
        if not opt.nox:
            e(f"buffer_load_dwordx4 v{112+(j&3)}, s[8:11], {so} offen offset:{(j&3)*1024}{opt.xmod} lds")
            S.issue("vm", ("X", u))
    for j in range(8): cx_issue(0, j)
    if opt.stamp:
        e("s_mov_b32 s62, s60")
        nstamp[0] = 1
    e("s_and_b32 s21, s18, 1")
    e("s_lshr_b32 s22, s18, 1")
    e("v_and_b32 v10, 31, v7")
    e("v_lshrrev_b32 v11, 5, v7")
    e("v_lshrrev_b32 v2, 3, v10")
    e("v_lshrrev_b32 v3, 2, v10")
    e("v_lshrrev_b32 v4, 1, v10")
    e("v_xor_b32 v3, v3, v4")
    e("v_and_b32 v3, 1, v3")
    e("v_lshl_or_b32 v2, v3, 2, v2")
    e("v_xor_b32 v2, v2, v11")
    e("v_lshlrev_b32 v2, 4, v2")
    e("v_lshl_add_u32 v9, v10, 7, v2")
    e("s_lshl_b32 s23, s21, 14")
    e("s_lshl_b32 s24, s22, 13")
    e(f"s_add_u32 s24, s24, {WRING}")
    XA = [2, 3, 4, 5]
    WA = [64, 65, 66, 67]
    for ks in range(4):
        e(f"v_xor_b32 v8, {ks*32}, v9")
        e(f"v_add_u32 v{XA[ks]}, s23, v8")
        e(f"v_add_u32 v{WA[ks]}, s24, v8")
    for r in range(128, 256):
        e(f"v_mov_b32 v{r}, 0")
    e("s_mov_b32 s31, 0xffff0000")
    e("s_mov_b32 s30, 0x4b800000")
    e("v_subrev_u32 v74, s93, v12")
    e(f"v_and_b32 v74, {RM}, v74")
    if RM != 15:
        e(f"v_and_b32 v75, {15 - RM}, v12")
        e("v_or_b32 v74, v74, v75")
    e("v_lshlrev_b32 v72, 9, v74")
    e("v_lshl_add_u32 v72, v13, 5, v72")
    e(f"v_add_u32 v72, {STAB}, v72")
    e("v_lshlrev_b32 v73, 8, v74")
    e("v_lshl_add_u32 v73, v13, 4, v73")
    e(f"v_add_u32 v73, {ATAB}, v73")
    e("s_waitcnt vmcnt(%d)" % (0 if opt.nox else 8))
    for d in range(4):
        e(f"v_lshlrev_b32 v{80+2*d}, 16, v{16+d}")
        e(f"v_and_b32 v{81+2*d}, s31, v{16+d}")
        e(f"v_lshlrev_b32 v{88+2*d}, 16, v{20+d}")
        e(f"v_and_b32 v{89+2*d}, s31, v{20+d}")
    for d in range(8):
        e(f"v_mul_f32_e64 v{88+d}, -v{88+d}, v{80+d}")
    for d in range(8):
        e(f"v_mul_f32 v{80+d}, s30, v{80+d}")
    for d in range(2):
        e(f"v_lshlrev_b32 v{96+2*d}, 16, v{24+d}")
        e(f"v_and_b32 v{97+2*d}, s31, v{24+d}")
    e("ds_write_b128 v72, v[80:83]")
    e("ds_write_b128 v72, v[84:87] offset:16")
    e("ds_write_b128 v72, v[88:91] offset:8192")
    e("ds_write_b128 v72, v[92:95] offset:8208")
    e("ds_write_b128 v73, v[96:99]")
    e("s_lshl_b32 s25, s19, 8")
    e("s_lshl_b32 s26, s21, 7")
    e("s_add_u32 s25, s25, s26")
    e("s_mul_i32 s25, s25, 7168")
    e("s_lshl_b32 s26, s20, 8")
    e("s_lshl_b32 s27, s22, 7")
    e("s_add_u32 s26, s26, s27")
    e("s_add_u32 s25, s25, s26")
    e("s_add_u32 s40, s14, s25")
    e("s_addc_u32 s41, s15, 0")
    e("s_and_b32 s41, s41, 0xffff")
    e("s_sub_u32 s42, 14680064, s25")
    e("s_mov_b32 s43, 0x20000")
    e("v_and_b32 v12, 7, v10")
    e("v_lshlrev_b32 v13, 1, v11")
    e("v_xor_b32 v12, v12, v13")
    e("v_lshlrev_b32 v12, 4, v12")
    e("v_lshl_add_u32 v12, v10, 7, v12")
    e("s_lshl_b32 s26, s18, 14")
    e(f"s_add_u32 s26, s26, {EPI}")
    e("v_add_u32 v12, s26, v12")
    EW = [72, 73, 74, 75]
    e("s_waitcnt lgkmcnt(0)")
    for tn in range(2):
        for q in range(2):
            e(f"v_xor_b32 v{EW[tn*2+q]}, {(4*tn+q)<<4}, v12")
    e("v_lshrrev_b32 v13, 3, v7")
    e("v_and_b32 v14, 7, v7")
    e("v_xor_b32 v15, v14, v13")
    e("v_lshlrev_b32 v15, 4, v15")
    e("v_lshl_add_u32 v15, v13, 7, v15")
    e("v_add_u32 v76, s26, v15")
    e("v_mul_u32_u24 v77, 7168, v13")
    e("v_lshl_add_u32 v77, v14, 4, v77")
    e("s_mov_b32 s28, 0")
    e("s_mov_b32 s29, 0")
    e("s_mov_b32 s44, 0x8000")
    e("s_mov_b32 s45, 0xffff0000")
    e("s_barrier")
    stamp()
    for j in range(8): cx_issue(1, j)
    F = [dict(x=[16, 20, 24, 28], w=[32, 36]), dict(x=[40, 44, 48, 52], w=[56, 60])]
    def acc(tn, tm):
        b = 128 + (tn * 4 + tm) * 16
        return f"v[{b}:{b+15}]"
    def rd(buf, kind, idx, t, ks):
        if opt.noc: return
        if kind == "x":
            r = F[buf]["x"][idx]
            e(f"ds_read_b128 v[{r}:{r+3}], v{XA[ks]} offset:{idx*4096}")
        else:
            r = F[buf]["w"][idx]; off = idx * 4096 + (t & 1) * 16384
            e(f"ds_read_b128 v[{r}:{r+3}], v{WA[ks]} offset:{off}")
        S.issue("lgkm", (t, ks, kind, idx))
    order = [("w", 0), ("x", 0), ("x", 1), ("x", 2), ("x", 3), ("w", 1)]
    def phase(mf, rdspec, site, tm_major=False, after=None, xd=None):
        if tm_major: mfs = [(tn, tm) for tm in range(4) for tn in range(2)]
        else: mfs = [(tn, tm) for tn in range(2) for tm in range(4)]
        reads = list(order) if rdspec else []
        ri = 0
        for mi, (tn, tm) in enumerate(mfs):
            for _ in range(opt.rpm):
                if ri < len(reads):
                    kind, idx = reads[ri]; ri += 1
                    rd(rdspec[2], kind, idx, rdspec[0], rdspec[1])
            t, ks, buf = mf
            if mi <= 4: S.wait("lgkm", (site, mi), {(t, ks, "w", tn), (t, ks, "x", tm)})
            if not opt.nomfma:
                xr = F[buf]["x"][tm]; wr = F[buf]["w"][tn]
                if opt.fake16:
                    b0 = 128 + (tn * 4 + tm) * 16 + (ks & 1) * 8
                    xr2 = F[buf]["x"][(tm + 1) % 4]
                    e(f"v_mfma_f32_16x16x32_bf16 v[{b0}:{b0+3}], v[{wr}:{wr+3}], v[{xr}:{xr+3}], v[{b0}:{b0+3}]")
                    e(f"v_mfma_f32_16x16x32_bf16 v[{b0+4}:{b0+7}], v[{wr}:{wr+3}], v[{xr2}:{xr2+3}], v[{b0+4}:{b0+7}]")
                else:
                    e(f"v_mfma_f32_32x32x16_bf16 {acc(tn,tm)}, v[{wr}:{wr+3}], v[{xr}:{xr+3}], {acc(tn,tm)}")
            if after and mi == 6: after()
            if xd and mi in xd[1]:
                if xd[2]: cx_issue(xd[0], xd[2].pop(0))
    def advance_stage():
        e("s_cmp_eq_u32 s29, 2")
        e("s_cselect_b32 s46, s45, s44")
        e("s_cselect_b32 s47, -1, s29")
        e("s_add_u32 s29, s47, 1")
        for ks in range(4):
            e(f"v_add_u32 v{XA[ks]}, s46, v{XA[ks]}")
    e("s_waitcnt vmcnt(%d)" % (0 if opt.nox else 8))
    e("s_barrier")
    if opt.stamp:
        e("s_memtime s[88:89]")
        stamp()
        e("s_mov_b32 s86, s88")
    for kind, idx in order: rd(0, kind, idx, 0, 0)
    _q = list(S.q["vm"])
    n0 = len(opt.xpos.split(",")) if "0" in opt.xph.split(",") else 0
    for jj in range(n0): cx_issue(2, jj)
    S.q["vm"] = _q
    e("s_branch L_cB0")
    S.d(".p2align 6")
    S.lab("L_cloop")
    S.emit = True
    saveL = S.L
    body = {}
    xpos = [int(v) for v in opt.xpos.split(",")]
    for t in range(NT):
        par = t & 1
        tail = t >= NT - 2
        site0 = ("tail", par) if tail else par
        S.L = []
        S.emit = True
        js = list(range(8))
        xd = None if tail else (t + 2, xpos, js)
        xph = [int(v) for v in opt.xph.split(",")]
        def xdp(p): return xd if p in xph else None
        if opt.epo and t == NT - 1:
            body[t] = []
            continue
        if t > 0:
            S.wait("vm", ("X", site0), {("X", t)})
            S.waitall("lgkm")
            e("s_barrier")
            phase((t-1, 3, 1), (t, 0, 0), (site0, 0), xd=xdp(0))
        else:
            saveL_extra = []
        if par == 0 and not tail: S.lab("L_cB0")
        if t == 0:
            for _ in range(n0):
                js.pop(0); S.issue("vm", ("X", 2))
        phase((t, 0, 0), (t, 1, 1), (site0, 1), xd=xdp(1))
        phase((t, 1, 1), (t, 2, 0), (site0, 2), xd=xdp(2))
        phase((t, 2, 0), (t, 3, 1), (site0, 3), after=advance_stage, xd=xdp(3))
        if par == 1 and not tail:
            e("s_add_u32 s28, s28, 1")
            e(f"s_cmp_lt_u32 s28, {NT//2 - 1}")
            e("s_cbranch_scc1 L_cloop")
        if t in (2, 3, NT - 2, NT - 1): body[t] = S.L
    S.L = saveL + body[2] + body[3] + body[NT - 2] + body[NT - 1]
    if not opt.epo:
        S.waitall("lgkm")
        phase((NT-1, 3, 1), None, ("fin", 0), tm_major=True)
        if opt.stamp:
            e("s_memtime s[88:89]")
            nstamp[0] = 20
            stamp()
            e("s_mov_b32 s87, s88")
        S.c("epilogue")
        S.reset()
        T = 80
        R = 16
        e("s_mov_b32 s27, 0")
        sidx = [0]
        def store(it):
            rr = R + (it % 8) * 4
            S.wait("lgkm", ("st", it), {("R", it)})
            e(f"buffer_store_dwordx4 v[{rr}:{rr+3}], v77, s[40:43], s27 offen{opt.stmod}")
            e(f"s_add_u32 s27, s27, 57344")
        if opt.stamp: e("s_nop 7")
        for tm in range(4):
            for tn in range(2):
                b = 128 + (tn * 4 + tm) * 16
                tb = T + ((tm * 2 + tn) % 4) * 8
                if tm == 3 and tn == 0 and not opt.stamp: e("s_nop 3")
                for d in range(8):
                    e(f"v_cvt_pk_bf16_f32 v{tb+d}, v{b+2*d}, v{b+2*d+1}")
                for q in range(2):
                    e(f"ds_write_b128 v{EW[tn*2+q]}, v[{tb+4*q}:{tb+4*q+3}] offset:{tm*4096}")
                    S.issue("lgkm", ("EWr", tm))
                if tm > 0:
                    store((tm - 1) * 4 + tn * 2); store((tm - 1) * 4 + tn * 2 + 1)
            for k in range(4):
                it = tm * 4 + k
                r = R + (it % 8) * 4
                e(f"ds_read_b128 v[{r}:{r+3}], v76 offset:{it*1024}")
                S.issue("lgkm", ("R", it))
        for it in range(12, 16): store(it)
    else:
        S.c("last K step: accumulators finish row block by row block; the epilogue overlaps the MFMAs")
        t = NT - 1
        e("s_waitcnt vmcnt(0)")
        S.waitall("lgkm")
        S.reset()
        e("s_barrier")
        W15 = {(ks, tn): 96 + (ks * 2 + tn) * 4 for ks in range(4) for tn in range(2)}
        XB = [[16 + 4 * ks for ks in range(4)], [40 + 4 * ks for ks in range(4)]]
        SR = [32, 36, 56, 60]
        TC = [80, 88]
        def rw(ks, tn):
            r = W15[(ks, tn)]
            e(f"ds_read_b128 v[{r}:{r+3}], v{WA[ks]} offset:{tn*4096 + (t & 1)*16384}")
            S.issue("lgkm", ("w", ks, tn))
        def rx(tm, ks):
            r = XB[tm & 1][ks]
            e(f"ds_read_b128 v[{r}:{r+3}], v{XA[ks]} offset:{tm*4096}")
            S.issue("lgkm", ("x", tm, ks))
        def cvt(tm, tn, d):
            b_ = 128 + (tn * 4 + tm) * 16
            e(f"v_cvt_pk_bf16_f32 v{TC[tn]+d}, v{b_+2*d}, v{b_+2*d+1}")
        def ewr(tm, tn, q):
            e(f"ds_write_b128 v{EW[tn*2+q]}, v[{TC[tn]+4*q}:{TC[tn]+4*q+3}] offset:{tm*4096}")
            S.issue("lgkm", ("EWr", tm))
        def erd(tm, k):
            it = tm * 4 + k
            e(f"ds_read_b128 v[{SR[k]}:{SR[k]+3}], v76 offset:{it*1024}")
            S.issue("lgkm", ("R", it))
        def est(tm, k):
            it = tm * 4 + k
            S.wait("lgkm", ("st", it), {("R", it)})
            e(f"buffer_store_dwordx4 v[{SR[k]}:{SR[k]+3}], v77, s[40:43], s27 offen{opt.stmod}")
            e(f"s_add_u32 s27, s27, 57344")
        def epi_list(tm):
            fl = []
            for tn in range(2):
                for d in range(8): fl.append(lambda tn=tn, d=d: cvt(tm, tn, d))
                for q in range(2): fl.append(lambda tn=tn, q=q: ewr(tm, tn, q))
            for k in range(4): fl.append(lambda k=k: erd(tm, k))
            return fl
        def run_block(mfmas, early, late):
            n = len(mfmas)
            for i, mf in enumerate(mfmas):
                mf()
                rem = n - i
                k = -(-len(early) // max(1, min(rem, 2))) if i < 2 else len(early)
                for _ in range(min(k, len(early))): early.pop(0)()
                if i >= 2:
                    k = -(-len(late) // rem)
                    for _ in range(min(k, len(late))): late.pop(0)()
            for f in early + late: f()
        e("s_mov_b32 s27, 0")
        mf = []
        for tn in range(2):
            for tm in range(4):
                xr = F[1]["x"][tm]; wr = F[1]["w"][tn]
                mf.append(lambda tn=tn, tm=tm, xr=xr, wr=wr: e(f"v_mfma_f32_32x32x16_bf16 {acc(tn,tm)}, v[{wr}:{wr+3}], v[{xr}:{xr+3}], {acc(tn,tm)}"))
        rds = []
        for ks in range(4):
            rds += [lambda ks=ks: rw(ks, 0), lambda ks=ks: rx(0, ks), lambda ks=ks: rw(ks, 1)]
        for i, m_ in enumerate(mf):
            m_()
            for _ in range(2 if i < 4 else 1):
                if rds: rds.pop(0)()
        for f in rds: f()
        for tm in range(4):
            mf = []
            for ks in range(4):
                for tn in range(2):
                    def m_(ks=ks, tn=tn, tm=tm):
                        S.wait("lgkm", ("ep", tm, ks, tn), {("w", ks, tn), ("x", tm, ks)})
                        xr = XB[tm & 1][ks]; wr = W15[(ks, tn)]
                        e(f"v_mfma_f32_32x32x16_bf16 {acc(tn,tm)}, v[{wr}:{wr+3}], v[{xr}:{xr+3}], {acc(tn,tm)}")
                    mf.append(m_)
            early = []
            if tm + 1 < 4: early += [lambda ks=ks: rx(tm + 1, ks) for ks in range(4)]
            if tm >= 2: early += [lambda k=k: est(tm - 2, k) for k in range(4)]
            late = epi_list(tm - 1) if tm >= 1 else []
            run_block(mf, early, late)
        if opt.stamp:
            e("s_memtime s[88:89]")
            nstamp[0] = 20
            stamp()
            e("s_mov_b32 s87, s88")
        for k in range(4): est(2, k)
        e("s_nop 7")
        for f in epi_list(3): f()
        for k in range(4): est(3, k)
    if opt.stamp:
        stamp()
        e("s_waitcnt vmcnt(0)")
        stamp()
        stamp_store(e, 26, 62)
    e("s_endpgm")

    S.reset()
    S.lab("L_producer")
    nstamp[0] = 0
    e("s_sub_u32 s21, s18, 4")
    if opt.pprio: e(f"s_setprio {opt.pprio}")
    e("v_lshrrev_b32 v9, 5, v7")
    e("v_and_b32 v11, 31, v7")
    e("s_lshl_b32 s22, s21, 1")
    e("v_add_u32 v9, s22, v9")
    e("v_mul_u32_u24 v2, 114688, v9")
    e("v_lshl_add_u32 v2, v11, 4, v2")
    for j in range(1, 8):
        e(f"s_mov_b32 s{43+j}, {j*14336}")
    e("s_mov_b32 s30, 903680")
    e("s_mov_b32 s31, 0x20000")
    e("s_lshl_b32 s22, s20, 9")
    e("s_waitcnt lgkmcnt(0)")
    e("s_mov_b32 s14, 0")
    e("s_mov_b32 s15, 0")
    e("s_add_u32 s8, s6, s22")
    e("s_addc_u32 s9, s7, 0")
    e("s_and_b32 s9, s9, 0xffff")
    def set_k(which):
        cnt = "s14" if which == "q" else "s15"
        e(f"s_add_u32 s12, s93, {cnt}")
        e(f"s_and_b32 s12, s12, {RM}")
        if RM != 15:
            e(f"s_and_b32 s13, {cnt}, {15 - RM}")
            e("s_or_b32 s12, s12, s13")
        if opt.noadv: e("s_mov_b32 s12, 0")
        if which == "q":
            e("s_mul_i32 s12, s12, 917504")
            e("s_add_u32 s28, s8, s12")
            e("s_addc_u32 s29, s9, 0")
        else:
            e("s_lshl_b32 s12, s12, 7")
            e("s_add_u32 s24, s10, s12")
            e("s_addc_u32 s25, s11, 0")
        e(f"s_add_u32 {cnt}, {cnt}, 1")
    def qb(b): return 256 - 32 * NQ + 32 * b
    def issue_x(u, j):
        if j == 0:
            e("s_add_u32 m0, s23, s33")
            set_k("x")
        if j == 4:
            e("s_add_u32 m0, m0, 0x1000")
            e(f"s_add_u32 s33, s33, 0x8000")
            e(f"s_cmp_eq_u32 s33, {NX*32768}")
            e("s_cselect_b32 s33, 0, s33")
        so = "0" if j == 0 else f"s{50+j}"
        if not opt.nox:
            off = (j & 3) * 1024
            e(f"buffer_load_dwordx4 v{80+(j&3)}, s[24:27], {so} offen offset:{off}{opt.xmod} lds")
            S.issue("vm", ("X", u))
    def issue_q(u, j):
        b = u % NQ
        if j == 0: set_k("q")
        r = qb(b) + 4 * j
        so = "0" if j == 0 else f"s{43+j}"
        if not opt.noq:
            e(f"buffer_load_dwordx4 v[{r}:{r+3}], v2, s[28:31], {so} offen{opt.qmod}")
            S.issue("vm", ("Q", u))
    for j in range(8): issue_q(0, j)
    if opt.stamp:
        e("s_mov_b32 s62, s60")
        nstamp[0] = 1
    e("v_and_b32 v12, 3, v11")
    e("v_bfe_u32 v13, v11, 2, 1")
    e("v_lshrrev_b32 v14, 3, v11")
    e("v_lshlrev_b32 v14, 5, v14")
    e("v_lshl_add_u32 v14, v12, 3, v14")
    e("v_lshl_add_u32 v14, v13, 2, v14")
    e("v_lshl_or_b32 v12, v13, 2, v12")
    e("v_xor_b32 v12, v12, v9")
    e("v_lshlrev_b32 v12, 4, v12")
    e("v_lshl_add_u32 v5, v14, 7, v12")
    e(f"v_add_u32 v5, {WRING}, v5")
    e("v_xor_b32 v6, 64, v5")
    e("v_lshlrev_b32 v3, 4, v11")
    e(f"v_add_u32 v3, {STAB}, v3")
    e("v_lshlrev_b32 v4, 5, v9")
    e(f"v_add_u32 v4, {ATAB}, v4")
    e("s_mov_b32 s92, 0")
    nx0 = 0
    nq0 = 1
    for g in opt.pre.split(","):
        if g == "q":
            for j in range(8): issue_q(nq0, j)
            nq0 += 1
    stamp()
    e("s_barrier")
    for g in opt.pro.split(","):
        if g == "q":
            for j in range(8): issue_q(nq0, j)
            nq0 += 1
    TB = [16, 32]
    def tab_read(u):
        r = TB[u & 1]
        e(f"ds_read_b128 v[{r}:{r+3}], v3");                S.issue("lgkm", ("T", u))
        e(f"ds_read_b128 v[{r+4}:{r+7}], v3 offset:8192");  S.issue("lgkm", ("T", u))
        e(f"ds_read_b128 v[{r+8}:{r+11}], v4");             S.issue("lgkm", ("T", u))
        e(f"ds_read_b128 v[{r+12}:{r+15}], v4 offset:16");  S.issue("lgkm", ("T", u))
        e("v_add_u32 v3, 512, v3")
        e("v_add_u32 v4, 256, v4")
    TT = [48, 56]
    DD = [64, 68, 72, 76]
    tab_read(0)
    S.c("ALIGN_ON") if opt.align else None
    ramp = [int(v) for v in opt.ramp.split(",")]
    NH = len(ramp)
    depth = nq0 + sum(ramp) - NH
    NLOOP = NT - depth
    assert (NLOOP - NH) % 4 == 0 and depth <= NQ - 1, (NLOOP, NH, depth)
    nextq = nq0
    for t in range(-1, NT - 1):
        u = t + 1
        b = u % NQ
        tail = u >= NLOOP
        head = u < NH
        S.emit = head or (u < NH + 4) or tail
        if u == NH:
            S.d(".p2align 6")
            S.lab("L_ploop")
        site = ("tail", u) if tail else (("head", u) if head else b)
        S.c(f"producer iteration u%4={b}" + (" (tail)" if tail else " (head)" if head else ""))
        ng = ramp[u] if head else (0 if tail else 1)
        qlist = list(range(nextq, nextq + ng)); nextq += ng
        tb = TB[u & 1]
        vm = [("q", qq, j) for qq in qlist for j in range(8)]
        def do_vm(n):
            for _ in range(n):
                if vm:
                    k, uu, j = vm.pop(0)
                    (issue_x if k == "x" else issue_q)(uu, j)
        if opt.stamp >= 2: e("s_memtime s[60:61]")
        do_vm(opt.burst)
        if u + 1 < NT: tab_read(u + 1)
        S.wait("lgkm", ("T", site), {("T", u)})
        S.wait("vm", ("Q", site), {("Q", u)})
        par = (u & 1) * 16384
        total = len(vm)
        slot = [0]; issued = [0]
        nsl = opt.nsl
        def slot_vm():
            slot[0] += 1
            k = slot[0] - opt.qs0
            target = 0 if k <= 0 else min(total, (total * k + nsl - 1) // nsl)
            n = target - issued[0]
            if n > 0:
                do_vm(n); issued[0] += n
        def wr(c):
            if opt.nodq or opt.nowr: return
            a = "v5" if c < 2 else "v6"
            e(f"ds_write_b128 {a}, v[{DD[c]}:{DD[c]+3}] offset:{par + c*128}")
            S.issue("lgkm", ("W", u))
        for c in range(4):
            T = TT[c & 1]
            if not opt.nodq:
                for j in range(8):
                    q = qb(b) + 4 * j + c
                    e(f"v_fma_mix_f32 v{T+j}, v{q}, v{tb+c}, v{tb+4+c} op_sel_hi:[1,0,0]")
                    if j == 3: slot_vm()
            else:
                slot_vm()
            slot_vm()
            if opt.wrpos == 1:
                if c == 2: wr(0)
                if c == 3: wr(2)
            if not opt.nodq:
                for j in range(8):
                    e(f"v_mul_f32_e64 v{T+j}, v{T+j}, v{tb+8+j}")
            slot_vm()
            if opt.wrpos == 1 and c == 2: wr(1)
            if not opt.nodq:
                for i in range(4):
                    e(f"v_cvt_pk_bf16_f32 v{DD[c]+i}, v{T+2*i}, v{T+2*i+1}")
            if opt.wrpos == 0: wr(c)
            if opt.wrpos == 1 and c == 3: wr(3)
            if opt.wrpos == 2 and c == 3:
                for cc in range(4): wr(cc)
            slot_vm()
        do_vm(99)
        S.wait("lgkm", ("W", site), {("W", u)})
        if opt.stamp >= 2:
            e("s_waitcnt lgkmcnt(0)")
            e("s_mov_b32 m0, s92"); e("s_nop 0"); e("v_writelane_b32 v100, s60, m0")
            e("s_add_u32 s92, s92, 1")
        e("s_barrier")
        if not tail and not head and (u - NH) % 4 == 3:
            e(f"s_cmp_lt_u32 s14, {NT}")
            e("s_cbranch_scc1 L_ploop")
    S.emit = True
    S.c("ALIGN_OFF")
    if opt.stamp:
        if opt.stamp >= 2:
            e("s_memtime s[60:61]")
            e("s_waitcnt lgkmcnt(0)")
            e("s_mov_b32 m0, s92"); e("s_nop 0"); e("v_writelane_b32 v100, s60, m0")
            e("s_lshl_b32 s56, s2, 11")
            e("s_lshl_b32 s57, s18, 8")
            e("s_add_u32 s56, s56, s57")
            e("s_add_u32 s56, s56, 128")
            e("s_add_u32 s56, s58, s56")
            e("s_addc_u32 s57, s59, 0")
            e("v_lshlrev_b32 v101, 2, v7")
            e("v_cmp_gt_u32 vcc, 32, v7")
            e("s_and_saveexec_b64 s[44:45], vcc")
            e("global_store_dword v101, v100, s[56:57]")
            e("s_mov_b64 exec, s[44:45]")
        stamp()
        stamp_store(e, 8, 62)
    S.lab("L_end")
    e("s_endpgm")
    if NPF:
        S.lab("L_prefetch")
        if opt.pf == 2:
            e("s_load_dwordx2 s[4:5], s[0:1], 0")
            e("v_lshrrev_b32 v1, 6, v0")
            e("v_and_b32 v7, 63, v0")
            e("s_and_b32 s16, s2, 7")
            e("v_readfirstlane_b32 s18, v1")
            e(f"s_sub_u32 s17, s2, {NWG}")
            e("s_lshr_b32 s17, s17, 3")
            e("s_and_b32 s19, s16, 1")
            e("s_lshl_b32 s19, s19, 2")
            e("s_add_u32 s19, s19, s17")
            e(f"s_mul_i32 s93, s17, {opt.rm}")
            e(f"s_and_b32 s93, s93, {RM}")
            e("s_and_b32 s20, s18, 3")
            e("s_lshr_b32 s21, s18, 2")
            e("s_lshl_b32 s20, s20, 6")
            e("v_add_u32 v2, s20, v7")
            e("v_lshlrev_b32 v2, 11, v2")
            e("s_lshl_b32 s22, s19, 19")
            e("s_mov_b32 s26, 522368")
            e("s_mov_b32 s27, 0x20000")
            e(f"s_add_u32 s6, s21, {opt.pf0}")
            e("s_waitcnt lgkmcnt(0)")
            e("s_add_u32 s4, s4, s22")
            e("s_addc_u32 s5, s5, 0")
            e("s_and_b32 s5, s5, 0xffff")
            S.lab("L_pfx")
            e("s_add_u32 s12, s93, s6")
            e(f"s_and_b32 s12, s12, {RM}")
            e(f"s_and_b32 s13, s6, {15 - RM}")
            e("s_or_b32 s12, s12, s13")
            e("s_lshl_b32 s12, s12, 7")
            e("s_add_u32 s24, s4, s12")
            e("s_addc_u32 s25, s5, 0")
            e("buffer_load_dword v8, v2, s[24:27], 0 offen")
            e("s_add_u32 s6, s6, 2")
            e(f"s_cmp_lt_u32 s6, {NT}")
            e("s_cbranch_scc1 L_pfx")
            e("s_endpgm")
        if opt.pf == 1:
            e("s_load_dwordx2 s[6:7], s[0:1], 8")
            e("v_lshrrev_b32 v1, 6, v0")
            e("v_and_b32 v7, 63, v0")
            e("s_and_b32 s16, s2, 7")
            e("v_readfirstlane_b32 s18, v1")
            e(f"s_sub_u32 s17, s2, {NWG}")
            e("s_lshr_b32 s17, s17, 3")
            e("s_cmp_ge_u32 s18, 7")
            e("s_cbranch_scc1 L_end")
            e("s_lshr_b32 s20, s16, 1")
            e("s_mul_i32 s20, s20, 7")
            e("s_add_u32 s20, s20, s18")
            e(f"s_mul_i32 s21, s17, {opt.rm}")
            e(f"s_mul_i32 s22, s18, {opt.rn}")
            e("s_add_u32 s21, s21, s22")
            e("s_add_u32 s21, s21, 1")
            e(f"s_and_b32 s21, s21, {RM}")
            e("v_mul_u32_u24 v2, 14336, v7")
            e("s_lshl_b32 s22, s20, 9")
            e("s_mov_b32 s30, 903680")
            e("s_mov_b32 s31, 0x20000")
            e("s_waitcnt lgkmcnt(0)")
            e("s_add_u32 s8, s6, s22")
            e("s_addc_u32 s9, s7, 0")
            e("s_and_b32 s9, s9, 0xffff")
            phases = []
            if opt.pfa: phases.append(("A", 0))
            phases.append(("B", 8))
            for name, add in phases:
                if name == "A":
                    e(f"s_cmp_ge_u32 s18, {opt.pfa}")
                    e("s_cbranch_scc1 L_pfB")
                else:
                    S.lab("L_pfB")
                e(f"s_add_u32 s12, s21, {add}")
                e("s_mul_i32 s12, s12, 917504")
                e("s_add_u32 s28, s8, s12")
                e("s_addc_u32 s29, s9, 0")
                for i in range(4):
                    e(f"buffer_load_dword v{8+i}, v2, s[28:31], 0 offen offset:{i*128}")
            e("s_endpgm")


    hdr = HEADER + f"; @launch grid=({NWG + NPF},1,1) block=(512,1,1) lds={LDS}\n"
    pre = f""".amdgcn_target "amdgcn-amd-amdhsa--gfx950"
.text
.globl {KNAME}
.p2align 8
.type {KNAME},@function
{KNAME}:
"""
    post = f""".section .rodata,"a"
.p2align 6
.amdhsa_kernel {KNAME}
  .amdhsa_next_free_vgpr 256
  .amdhsa_next_free_sgpr 96
  .amdhsa_accum_offset 256
  .amdhsa_group_segment_fixed_size 0
  .amdhsa_kernarg_size 64
  .amdhsa_user_sgpr_count 2
  .amdhsa_user_sgpr_kernarg_segment_ptr 1
  .amdhsa_system_sgpr_workgroup_id_x 1
.end_amdhsa_kernel
"""
    return hdr + pre + "\n".join(S.resolve()) + "\n" + post

def parse(argv=None):
    ap = argparse.ArgumentParser()
    ap.add_argument("-o", default="k.s")
    ap.add_argument("--stamp", type=int, default=0)
    for f in ("nomfma", "nodq", "nox", "noq", "noc", "noadv", "nowr", "fake16"):
        ap.add_argument("--" + f, action="store_true")
    ap.add_argument("--xpos", default="6,7")
    ap.add_argument("--nsl", type=int, default=16)
    ap.add_argument("--qs0", type=int, default=0)
    ap.add_argument("--xph", default="0,1,2,3")
    ap.add_argument("--pf", type=int, default=0)
    ap.add_argument("--pfa", type=int, default=4)
    ap.add_argument("--epo", type=int, default=0)
    ap.add_argument("--pre", default="")
    ap.add_argument("--pf0", type=int, default=1)
    ap.add_argument("--ramp", default="1,2")
    ap.add_argument("--pro", default="")
    ap.add_argument("--align", type=int, default=1)
    ap.add_argument("--cprio", type=int, default=3)
    ap.add_argument("--pprio", type=int, default=0)
    ap.add_argument("--rotn", type=int, default=8)
    ap.add_argument("--rm", type=int, default=2)
    ap.add_argument("--rn", type=int, default=1)
    ap.add_argument("--wrpos", type=int, default=0)
    ap.add_argument("--burst", type=int, default=0)
    ap.add_argument("--rpm", type=int, default=1)
    ap.add_argument("--stmod", default="nt")
    ap.add_argument("--qmod", default="")
    ap.add_argument("--xmod", default="")
    opt = ap.parse_args(argv)
    for k in ("stmod", "qmod", "xmod"):
        v = getattr(opt, k)
        if v: setattr(opt, k, " " + v)
    return opt

if __name__ == "__main__":
    opt = parse()
    open(opt.o, "w").write(gen(opt))
```

```python
import sys, argparse, re

KNAME = "standalone__weight_only_int_omniquant__prompt_kernel"
HEADER = """; Kernarg layout for this problem (64 bytes, ptrs only, base s[0:1]):
;
;   waves 0-3: MFMA consumers (128x64 each, v_mfma_f32_32x32x16_bf16, D = W'^T x^T)
"""
NT = 16

def isize(line):
    s = line.strip()
    if not s or s.startswith(";") or s.endswith(":") or s.startswith("."): return 0
    s = s.split(";")[0].strip()
    op = s.split()[0]
    args = s[len(op):]
    def has_lit():
        for tok in re.split(r"[,\s]+", args):
            tok = tok.strip()
            if not tok: continue
            if re.fullmatch(r"-?(0x[0-9a-fA-F]+|\d+)", tok):
                v = int(tok, 0)
                if v < -16 or v > 64: return True
            elif re.fullmatch(r"L_\w+-\w+", tok): return True
        return False
    if op.startswith(("ds_", "buffer_", "global_", "flat_", "s_load", "s_memtime", "s_memrealtime", "v_mfma", "v_pk_", "v_fma_mix")): return 8
    if op in ("s_waitcnt", "s_barrier", "s_nop", "s_endpgm", "s_setprio", "s_branch", "s_sleep") or op.startswith("s_cbranch"): return 4
    if op.startswith("s_"):
        if op in ("s_movk_i32", "s_addk_i32", "s_mulk_i32"): return 4
        return 8 if has_lit() else 4
    if op.startswith("v_"):
        vop3 = ("v_fma_f32", "v_cvt_pk_bf16_f32", "v_lshl_add_u32", "v_lshl_or_b32", "v_mul_lo_u32", "v_bfe_u32", "v_add3_u32", "v_perm_b32", "v_and_or_b32", "v_readlane_b32", "v_writelane_b32", "v_cmp_gt_u32")
        if op in vop3 or op.endswith("_e64"): return 8
        return 8 if has_lit() else 4
    raise ValueError(line)

class Stream:
    def __init__(self):
        self.L = []
        self.sites = {}
        self.emit = True
        self.maxn = {"vm": 63, "lgkm": 15}
        self.reset()
    def reset(self):
        self.q = {"vm": [], "lgkm": []}
    def e(self, s):
        if self.emit: self.L.append("    " + s)
    def lab(self, s):
        if self.emit: self.L.append(s + ":")
    def c(self, s):
        if self.emit: self.L.append("    ; " + s)
    def d(self, s):
        if self.emit: self.L.append(s)
    def issue(self, ctr, tag): self.q[ctr].append(tag)
    def wait(self, ctr, site, tags):
        q = self.q[ctr]
        last = -1
        for i, t in enumerate(q):
            if t in tags: last = i
        n = self.maxn[ctr] if last < 0 else min(len(q) - 1 - last, self.maxn[ctr])
        key = (ctr, site)
        self.sites[key] = min(self.sites.get(key, 99), n)
        if self.emit: self.L.append(("wait", key))
    def waitall(self, ctr):
        self.q[ctr] = []
        self.e(f"s_waitcnt {'vmcnt' if ctr=='vm' else 'lgkmcnt'}(0)")
    def resolve(self, align_regions=True):
        out = []
        for s in self.L:
            if isinstance(s, tuple):
                ctr, site = s[1]
                n = self.sites[s[1]]
                if n >= self.maxn[ctr]: continue
                out.append(f"    s_waitcnt {'vmcnt' if ctr=='vm' else 'lgkmcnt'}({n})")
            else:
                out.append(s)
        res = []
        off = 0
        on = False
        for s in out:
            t = s.strip()
            if t == "; ALIGN_ON": on = True
            if t == "; ALIGN_OFF": on = False
            if t.startswith(".p2align"):
                a = 1 << int(t.split()[1].rstrip(","))
                off = (off + a - 1) // a * a
                res.append(s); continue
            sz = isize(s)
            if on and sz == 8 and off % 8 == 4:
                res.append("    s_nop 0"); off += 4
            res.append(s); off += sz
        return res

def stamp_store(e, nst, first):
    e("s_waitcnt lgkmcnt(0)")
    e("s_lshl_b32 s56, s2, 11")
    e("s_lshl_b32 s57, s18, 8")
    e("s_add_u32 s56, s56, s57")
    e("s_add_u32 s58, s58, s56")
    e("s_addc_u32 s59, s59, 0")
    e("s_mov_b64 exec, 1")
    e("v_mov_b32 v24, 0")
    for i in range(nst):
        e(f"v_mov_b32 v16, s{first+i}")
        e(f"global_store_dword v24, v16, s[58:59] offset:{4*i}")

def gen(opt):
    NWG = 224
    NX = 3
    NQ = 4
    XRING = 0
    WRING = NX * 32768
    STAB = WRING + 32768
    ZTAB = STAB + 8192
    ATAB = ZTAB + 8192
    LDS = ATAB + 4096 + 512
    EPI = 32768
    S = Stream()
    e = S.e
    nstamp = [0]
    def stamp():
        if not opt.stamp: return
        e("s_memrealtime s[60:61]")
        e("s_waitcnt lgkmcnt(0)")
        e(f"s_mov_b32 s{62+nstamp[0]}, s60")
        nstamp[0] += 1
    RM = opt.rotn - 1
    NPF = 32 if opt.pf else 0
    e(f"s_cmp_ge_u32 s2, {NWG + NPF}")
    e("s_cbranch_scc1 L_end")
    if NPF and opt.pffirst:
        e(f"s_cmp_lt_u32 s2, {NPF}")
        e("s_cbranch_scc1 L_prefetch")
        e(f"s_sub_u32 s2, s2, {NPF}")
    elif NPF:
        e(f"s_cmp_ge_u32 s2, {NWG}")
        e("s_cbranch_scc1 L_prefetch")
    if opt.stamp:
        e("s_memrealtime s[60:61]")
    e("s_load_dwordx8 s[4:11], s[0:1], 0")
    e("s_load_dwordx4 s[12:15], s[0:1], 32")
    if opt.stamp:
        e("s_load_dwordx2 s[58:59], s[0:1], 56")
    e("v_lshrrev_b32 v1, 6, v0")
    e("s_and_b32 s16, s2, 7")
    e("s_lshr_b32 s17, s2, 3")
    e("v_readfirstlane_b32 s18, v1")
    e("s_and_b32 s19, s16, 1")
    e("s_lshl_b32 s19, s19, 2")
    e("s_and_b32 s20, s17, 3")
    e("s_lshr_b32 s21, s17, 2")
    e(f"s_mul_i32 s93, s20, {opt.rm}")
    e("s_add_u32 s19, s19, s20")
    e("s_lshr_b32 s20, s16, 1")
    e("s_mul_i32 s20, s20, 7")
    e("s_add_u32 s20, s20, s21")
    e(f"s_mul_i32 s21, s21, {opt.rn}")
    e("s_add_u32 s93, s93, s21")
    e(f"s_and_b32 s93, s93, {RM}")
    e("v_and_b32 v7, 63, v0")
    e("s_cmp_ge_u32 s18, 4")
    e("s_cbranch_scc1 L_producer")

    S.c("consumer waves")
    e(f"s_setprio {opt.cprio}")
    e("v_lshrrev_b32 v12, 4, v0")
    e("v_and_b32 v13, 15, v0")
    e("v_mul_u32_u24 v14, 7168, v12")
    e("v_lshl_add_u32 v14, v13, 4, v14")
    e("v_lshlrev_b32 v15, 3, v0")
    e("s_lshl_b32 s23, s20, 8")
    e("s_sub_u32 s34, 114688, s23")
    e("s_mov_b32 s35, 0x20000")
    e("s_mov_b32 s38, s34")
    e("s_mov_b32 s39, 0x20000")
    e("s_mov_b32 s42, 2048")
    e("s_mov_b32 s43, 0x20000")
    e("s_waitcnt lgkmcnt(0)")
    e("s_add_u32 s32, s8, s23")
    e("s_addc_u32 s33, s9, 0")
    e("s_and_b32 s33, s33, 0xffff")
    e("s_add_u32 s36, s10, s23")
    e("s_addc_u32 s37, s11, 0")
    e("s_and_b32 s37, s37, 0xffff")
    e("s_mov_b32 s40, s12")
    e("s_and_b32 s41, s13, 0xffff")
    e("buffer_load_dwordx4 v[16:19], v14, s[32:35], 0 offen")
    e("buffer_load_dwordx4 v[20:23], v14, s[36:39], 0 offen")
    e("buffer_load_dwordx2 v[24:25], v15, s[40:43], 0 offen")
    e("v_lshrrev_b32 v8, 3, v7")
    e("s_lshl_b32 s23, s18, 6")
    e("v_add_u32 v8, s23, v8")
    e("v_lshrrev_b32 v9, 5, v7")
    e("v_lshrrev_b32 v10, 4, v7")
    e("v_xor_b32 v10, v9, v10")
    e("v_and_b32 v10, 1, v10")
    e("v_lshlrev_b32 v10, 2, v10")
    e("v_and_b32 v11, 7, v7")
    e("v_xor_b32 v10, v10, v11")
    e("v_lshlrev_b32 v10, 4, v10")
    e("v_lshl_add_u32 v112, v8, 11, v10")
    for jj in range(1, 4):
        e(f"v_xor_b32 v{112+jj}, {jj<<4}, v112")
    for j in range(1, 8):
        e(f"s_mov_b32 s{47+j}, {j*16384 - (j&3)*1024}")
    e("s_lshl_b32 s55, s18, 13")
    e("s_lshl_b32 s23, s19, 19")
    e("s_add_u32 s4, s4, s23")
    e("s_addc_u32 s5, s5, 0")
    e("s_and_b32 s5, s5, 0xffff")
    e("s_mov_b32 s10, 522368")
    e("s_mov_b32 s11, 0x20000")
    e("s_mov_b32 s6, 0")
    e("s_mov_b32 s7, 0")
    def cx_set():
        e("s_add_u32 m0, s55, s7")
        e("s_add_u32 s12, s93, s6")
        e(f"s_and_b32 s12, s12, {RM}")
        if RM != 15:
            e(f"s_and_b32 s13, s6, {15 - RM}")
            e("s_or_b32 s12, s12, s13")
        if opt.noadv: e("s_mov_b32 s12, 0")
        e("s_lshl_b32 s12, s12, 7")
        e("s_add_u32 s8, s4, s12")
        e("s_addc_u32 s9, s5, 0")
        e("s_add_u32 s6, s6, 1")
    def cx_issue(u, j):
        if j == 0: cx_set()
        if j == 4:
            e("s_add_u32 m0, m0, 0x1000")
            e("s_add_u32 s7, s7, 0x8000")
            e(f"s_cmp_eq_u32 s7, {NX*32768}")
            e("s_cselect_b32 s7, 0, s7")
        so = "0" if j == 0 else f"s{47+j}"
        if not opt.nox:
            e(f"buffer_load_dwordx4 v{112+(j&3)}, s[8:11], {so} offen offset:{(j&3)*1024}{opt.xmod} lds")
            S.issue("vm", ("X", u))
    for j in range(8): cx_issue(0, j)
    if opt.stamp:
        e("s_mov_b32 s62, s60")
        nstamp[0] = 1
    e("s_and_b32 s21, s18, 1")
    e("s_lshr_b32 s22, s18, 1")
    e("v_and_b32 v10, 31, v7")
    e("v_lshrrev_b32 v11, 5, v7")
    e("v_lshrrev_b32 v2, 3, v10")
    e("v_lshrrev_b32 v3, 2, v10")
    e("v_lshrrev_b32 v4, 1, v10")
    e("v_xor_b32 v3, v3, v4")
    e("v_and_b32 v3, 1, v3")
    e("v_lshl_or_b32 v2, v3, 2, v2")
    e("v_xor_b32 v2, v2, v11")
    e("v_lshlrev_b32 v2, 4, v2")
    e("v_lshl_add_u32 v9, v10, 7, v2")
    e("s_lshl_b32 s23, s21, 14")
    e("s_lshl_b32 s24, s22, 13")
    e(f"s_add_u32 s24, s24, {WRING}")
    XA = [2, 3, 4, 5]
    WA = [64, 65, 66, 67]
    for ks in range(4):
        e(f"v_xor_b32 v8, {ks*32}, v9")
        e(f"v_add_u32 v{XA[ks]}, s23, v8")
        e(f"v_add_u32 v{WA[ks]}, s24, v8")
    for r in range(128, 256):
        e(f"v_mov_b32 v{r}, 0")
    e("s_mov_b32 s31, 0xffff0000")
    e("s_mov_b32 s30, 0x4b800000")
    e("v_subrev_u32 v74, s93, v12")
    e(f"v_and_b32 v74, {RM}, v74")
    if RM != 15:
        e(f"v_and_b32 v75, {15 - RM}, v12")
        e("v_or_b32 v74, v74, v75")
    e("v_lshlrev_b32 v72, 9, v74")
    e("v_lshl_add_u32 v72, v13, 5, v72")
    e(f"v_add_u32 v72, {STAB}, v72")
    e("v_lshlrev_b32 v73, 8, v74")
    e("v_lshl_add_u32 v73, v13, 4, v73")
    e(f"v_add_u32 v73, {ATAB}, v73")
    e("s_waitcnt vmcnt(%d)" % (0 if opt.nox else 8))
    for d in range(4):
        e(f"v_lshlrev_b32 v{80+2*d}, 16, v{16+d}")
        e(f"v_and_b32 v{81+2*d}, s31, v{16+d}")
        e(f"v_lshlrev_b32 v{88+2*d}, 16, v{20+d}")
        e(f"v_and_b32 v{89+2*d}, s31, v{20+d}")
    for d in range(8):
        e(f"v_mul_f32_e64 v{88+d}, -v{88+d}, v{80+d}")
    for d in range(8):
        e(f"v_mul_f32 v{80+d}, s30, v{80+d}")
    for d in range(2):
        e(f"v_lshlrev_b32 v{96+2*d}, 16, v{24+d}")
        e(f"v_and_b32 v{97+2*d}, s31, v{24+d}")
    e("ds_write_b128 v72, v[80:83]")
    e("ds_write_b128 v72, v[84:87] offset:16")
    e("ds_write_b128 v72, v[88:91] offset:8192")
    e("ds_write_b128 v72, v[92:95] offset:8208")
    e("ds_write_b128 v73, v[96:99]")
    e("s_lshl_b32 s25, s19, 8")
    e("s_lshl_b32 s26, s21, 7")
    e("s_add_u32 s25, s25, s26")
    e("s_mul_i32 s25, s25, 7168")
    e("s_lshl_b32 s26, s20, 8")
    e("s_lshl_b32 s27, s22, 7")
    e("s_add_u32 s26, s26, s27")
    e("s_add_u32 s25, s25, s26")
    e("s_add_u32 s40, s14, s25")
    e("s_addc_u32 s41, s15, 0")
    e("s_and_b32 s41, s41, 0xffff")
    e("s_sub_u32 s42, 14680064, s25")
    e("s_mov_b32 s43, 0x20000")
    e("v_and_b32 v12, 7, v10")
    e("v_lshlrev_b32 v13, 1, v11")
    e("v_xor_b32 v12, v12, v13")
    e("v_lshlrev_b32 v12, 4, v12")
    e("v_lshl_add_u32 v12, v10, 7, v12")
    e("s_lshl_b32 s26, s18, 14")
    e(f"s_add_u32 s26, s26, {EPI}")
    e("v_add_u32 v12, s26, v12")
    EW = [72, 73, 74, 75]
    e("s_waitcnt lgkmcnt(0)")
    for tn in range(2):
        for q in range(2):
            e(f"v_xor_b32 v{EW[tn*2+q]}, {(4*tn+q)<<4}, v12")
    e("v_lshrrev_b32 v13, 3, v7")
    e("v_and_b32 v14, 7, v7")
    e("v_xor_b32 v15, v14, v13")
    e("v_lshlrev_b32 v15, 4, v15")
    e("v_lshl_add_u32 v15, v13, 7, v15")
    e("v_add_u32 v76, s26, v15")
    e("v_mul_u32_u24 v77, 7168, v13")
    e("v_lshl_add_u32 v77, v14, 4, v77")
    e("s_mov_b32 s28, 0")
    e("s_mov_b32 s29, 0")
    e("s_mov_b32 s44, 0x8000")
    e("s_mov_b32 s45, 0xffff0000")
    e("s_barrier")
    stamp()
    for j in range(8): cx_issue(1, j)
    F = [dict(x=[16, 20, 24, 28], w=[32, 36]), dict(x=[40, 44, 48, 52], w=[56, 60])]
    def acc(tn, tm):
        b = 128 + (tn * 4 + tm) * 16
        return f"v[{b}:{b+15}]"
    def rd(buf, kind, idx, t, ks):
        if opt.noc: return
        if kind == "x":
            r = F[buf]["x"][idx]
            e(f"ds_read_b128 v[{r}:{r+3}], v{XA[ks]} offset:{idx*4096}")
        else:
            r = F[buf]["w"][idx]; off = idx * 4096 + (t & 1) * 16384
            e(f"ds_read_b128 v[{r}:{r+3}], v{WA[ks]} offset:{off}")
        S.issue("lgkm", (t, ks, kind, idx))
    order = [("w", 0), ("x", 0), ("x", 1), ("x", 2), ("x", 3), ("w", 1)]
    def phase(mf, rdspec, site, tm_major=False, after=None, xd=None):
        if tm_major: mfs = [(tn, tm) for tm in range(4) for tn in range(2)]
        else: mfs = [(tn, tm) for tn in range(2) for tm in range(4)]
        reads = list(order) if rdspec else []
        ri = 0
        for mi, (tn, tm) in enumerate(mfs):
            for _ in range(opt.rpm):
                if ri < len(reads):
                    kind, idx = reads[ri]; ri += 1
                    rd(rdspec[2], kind, idx, rdspec[0], rdspec[1])
            t, ks, buf = mf
            if mi <= 4: S.wait("lgkm", (site, mi), {(t, ks, "w", tn), (t, ks, "x", tm)})
            if not opt.nomfma:
                xr = F[buf]["x"][tm]; wr = F[buf]["w"][tn]
                if opt.fake16:
                    b0 = 128 + (tn * 4 + tm) * 16 + (ks & 1) * 8
                    xr2 = F[buf]["x"][(tm + 1) % 4]
                    e(f"v_mfma_f32_16x16x32_bf16 v[{b0}:{b0+3}], v[{wr}:{wr+3}], v[{xr}:{xr+3}], v[{b0}:{b0+3}]")
                    e(f"v_mfma_f32_16x16x32_bf16 v[{b0+4}:{b0+7}], v[{wr}:{wr+3}], v[{xr2}:{xr2+3}], v[{b0+4}:{b0+7}]")
                else:
                    e(f"v_mfma_f32_32x32x16_bf16 {acc(tn,tm)}, v[{wr}:{wr+3}], v[{xr}:{xr+3}], {acc(tn,tm)}")
            if after and mi == 6: after()
            if xd and mi in xd[1]:
                if xd[2]: cx_issue(xd[0], xd[2].pop(0))
    def advance_stage():
        e("s_cmp_eq_u32 s29, 2")
        e("s_cselect_b32 s46, s45, s44")
        e("s_cselect_b32 s47, -1, s29")
        e("s_add_u32 s29, s47, 1")
        for ks in range(4):
            e(f"v_add_u32 v{XA[ks]}, s46, v{XA[ks]}")
    e("s_waitcnt vmcnt(%d)" % (0 if opt.nox else 8))
    e("s_barrier")
    if opt.stamp:
        e("s_memtime s[88:89]")
        stamp()
        e("s_mov_b32 s86, s88")
    for kind, idx in order: rd(0, kind, idx, 0, 0)
    _q = list(S.q["vm"])
    n0 = len(opt.xpos.split(",")) if "0" in opt.xph.split(",") else 0
    for jj in range(n0): cx_issue(2, jj)
    S.q["vm"] = _q
    e("s_branch L_cB0")
    S.d(".p2align 6")
    S.lab("L_cloop")
    S.emit = True
    saveL = S.L
    body = {}
    xpos = [int(v) for v in opt.xpos.split(",")]
    for t in range(NT):
        par = t & 1
        tail = t >= NT - 2
        site0 = ("tail", par) if tail else par
        S.L = []
        S.emit = True
        js = list(range(8))
        xd = None if tail else (t + 2, xpos, js)
        xph = [int(v) for v in opt.xph.split(",")]
        def xdp(p): return xd if p in xph else None
        if opt.epo and t == NT - 1:
            body[t] = []
            continue
        if t > 0:
            S.wait("vm", ("X", site0), {("X", t)})
            S.waitall("lgkm")
            e("s_barrier")
            phase((t-1, 3, 1), (t, 0, 0), (site0, 0), xd=xdp(0))
        else:
            saveL_extra = []
        if par == 0 and not tail: S.lab("L_cB0")
        if t == 0:
            for _ in range(n0):
                js.pop(0); S.issue("vm", ("X", 2))
        phase((t, 0, 0), (t, 1, 1), (site0, 1), xd=xdp(1))
        phase((t, 1, 1), (t, 2, 0), (site0, 2), xd=xdp(2))
        phase((t, 2, 0), (t, 3, 1), (site0, 3), after=advance_stage, xd=xdp(3))
        if par == 1 and not tail:
            e("s_add_u32 s28, s28, 1")
            e(f"s_cmp_lt_u32 s28, {NT//2 - 1}")
            e("s_cbranch_scc1 L_cloop")
        if t in (2, 3, NT - 2, NT - 1): body[t] = S.L
    S.L = saveL + body[2] + body[3] + body[NT - 2] + body[NT - 1]
    if not opt.epo:
        S.waitall("lgkm")
        phase((NT-1, 3, 1), None, ("fin", 0), tm_major=True)
        if opt.stamp:
            e("s_memtime s[88:89]")
            nstamp[0] = 20
            stamp()
            e("s_mov_b32 s87, s88")
        S.c("epilogue")
        S.reset()
        T = 80
        R = 16
        e("s_mov_b32 s27, 0")
        sidx = [0]
        def store(it):
            rr = R + (it % 8) * 4
            S.wait("lgkm", ("st", it), {("R", it)})
            e(f"buffer_store_dwordx4 v[{rr}:{rr+3}], v77, s[40:43], s27 offen{opt.stmod}")
            e(f"s_add_u32 s27, s27, 57344")
        if opt.stamp: e("s_nop 7")
        for tm in range(4):
            for tn in range(2):
                b = 128 + (tn * 4 + tm) * 16
                tb = T + ((tm * 2 + tn) % 4) * 8
                if tm == 3 and tn == 0 and not opt.stamp: e("s_nop 3")
                for d in range(8):
                    e(f"v_cvt_pk_bf16_f32 v{tb+d}, v{b+2*d}, v{b+2*d+1}")
                for q in range(2):
                    e(f"ds_write_b128 v{EW[tn*2+q]}, v[{tb+4*q}:{tb+4*q+3}] offset:{tm*4096}")
                    S.issue("lgkm", ("EWr", tm))
                if tm > 0:
                    store((tm - 1) * 4 + tn * 2); store((tm - 1) * 4 + tn * 2 + 1)
            for k in range(4):
                it = tm * 4 + k
                r = R + (it % 8) * 4
                e(f"ds_read_b128 v[{r}:{r+3}], v76 offset:{it*1024}")
                S.issue("lgkm", ("R", it))
        for it in range(12, 16): store(it)
    else:
        S.c("last K step: accumulators finish row block by row block; the epilogue overlaps the MFMAs")
        t = NT - 1
        e("s_waitcnt vmcnt(0)")
        S.waitall("lgkm")
        S.reset()
        e("s_barrier")
        W15 = {(ks, tn): 96 + (ks * 2 + tn) * 4 for ks in range(4) for tn in range(2)}
        XB = [[16 + 4 * ks for ks in range(4)], [40 + 4 * ks for ks in range(4)]]
        SR = [32, 36, 56, 60]
        TC = [80, 88]
        def rw(ks, tn):
            r = W15[(ks, tn)]
            e(f"ds_read_b128 v[{r}:{r+3}], v{WA[ks]} offset:{tn*4096 + (t & 1)*16384}")
            S.issue("lgkm", ("w", ks, tn))
        def rx(tm, ks):
            r = XB[tm & 1][ks]
            e(f"ds_read_b128 v[{r}:{r+3}], v{XA[ks]} offset:{tm*4096}")
            S.issue("lgkm", ("x", tm, ks))
        def cvt(tm, tn, d):
            b_ = 128 + (tn * 4 + tm) * 16
            e(f"v_cvt_pk_bf16_f32 v{TC[tn]+d}, v{b_+2*d}, v{b_+2*d+1}")
        def ewr(tm, tn, q):
            e(f"ds_write_b128 v{EW[tn*2+q]}, v[{TC[tn]+4*q}:{TC[tn]+4*q+3}] offset:{tm*4096}")
            S.issue("lgkm", ("EWr", tm))
        def erd(tm, k):
            it = tm * 4 + k
            e(f"ds_read_b128 v[{SR[k]}:{SR[k]+3}], v76 offset:{it*1024}")
            S.issue("lgkm", ("R", it))
        def est(tm, k):
            it = tm * 4 + k
            S.wait("lgkm", ("st", it), {("R", it)})
            e(f"buffer_store_dwordx4 v[{SR[k]}:{SR[k]+3}], v77, s[40:43], s27 offen{opt.stmod}")
            e(f"s_add_u32 s27, s27, 57344")
        def epi_list(tm):
            fl = []
            for tn in range(2):
                for d in range(8): fl.append(lambda tn=tn, d=d: cvt(tm, tn, d))
                for q in range(2): fl.append(lambda tn=tn, q=q: ewr(tm, tn, q))
            for k in range(4): fl.append(lambda k=k: erd(tm, k))
            return fl
        def run_block(mfmas, early, late):
            n = len(mfmas)
            for i, mf in enumerate(mfmas):
                mf()
                rem = n - i
                k = -(-len(early) // max(1, min(rem, 2))) if i < 2 else len(early)
                for _ in range(min(k, len(early))): early.pop(0)()
                if i >= 2:
                    k = -(-len(late) // rem)
                    for _ in range(min(k, len(late))): late.pop(0)()
            for f in early + late: f()
        e("s_mov_b32 s27, 0")
        mf = []
        for tn in range(2):
            for tm in range(4):
                xr = F[1]["x"][tm]; wr = F[1]["w"][tn]
                mf.append(lambda tn=tn, tm=tm, xr=xr, wr=wr: e(f"v_mfma_f32_32x32x16_bf16 {acc(tn,tm)}, v[{wr}:{wr+3}], v[{xr}:{xr+3}], {acc(tn,tm)}"))
        rds = []
        for ks in range(4):
            rds += [lambda ks=ks: rw(ks, 0), lambda ks=ks: rx(0, ks), lambda ks=ks: rw(ks, 1)]
        for i, m_ in enumerate(mf):
            m_()
            for _ in range(2 if i < 4 else 1):
                if rds: rds.pop(0)()
        for f in rds: f()
        for tm in range(4):
            mf = []
            for ks in range(4):
                for tn in range(2):
                    def m_(ks=ks, tn=tn, tm=tm):
                        S.wait("lgkm", ("ep", tm, ks, tn), {("w", ks, tn), ("x", tm, ks)})
                        xr = XB[tm & 1][ks]; wr = W15[(ks, tn)]
                        e(f"v_mfma_f32_32x32x16_bf16 {acc(tn,tm)}, v[{wr}:{wr+3}], v[{xr}:{xr+3}], {acc(tn,tm)}")
                    mf.append(m_)
            early = []
            if tm + 1 < 4: early += [lambda ks=ks: rx(tm + 1, ks) for ks in range(4)]
            if tm >= 2: early += [lambda k=k: est(tm - 2, k) for k in range(4)]
            late = epi_list(tm - 1) if tm >= 1 else []
            run_block(mf, early, late)
        if opt.stamp:
            e("s_memtime s[88:89]")
            nstamp[0] = 20
            stamp()
            e("s_mov_b32 s87, s88")
        for k in range(4): est(2, k)
        e("s_nop 7")
        for f in epi_list(3): f()
        for k in range(4): est(3, k)
    if opt.stamp:
        stamp()
        e("s_waitcnt vmcnt(0)")
        stamp()
        stamp_store(e, 26, 62)
    e("s_endpgm")

    S.reset()
    S.lab("L_producer")
    nstamp[0] = 0
    e("s_sub_u32 s21, s18, 4")
    if opt.pprio: e(f"s_setprio {opt.pprio}")
    e("v_lshrrev_b32 v9, 5, v7")
    e("v_and_b32 v11, 31, v7")
    e("s_lshl_b32 s22, s21, 1")
    e("v_add_u32 v9, s22, v9")
    e("v_mul_u32_u24 v2, 114688, v9")
    e("v_lshl_add_u32 v2, v11, 4, v2")
    for j in range(1, 8):
        e(f"s_mov_b32 s{43+j}, {j*14336}")
    e("s_mov_b32 s30, 903680")
    e("s_mov_b32 s31, 0x20000")
    e("s_lshl_b32 s22, s20, 9")
    e("s_waitcnt lgkmcnt(0)")
    e("s_mov_b32 s14, 0")
    e("s_mov_b32 s15, 0")
    e("s_add_u32 s8, s6, s22")
    e("s_addc_u32 s9, s7, 0")
    e("s_and_b32 s9, s9, 0xffff")
    def set_k(which):
        cnt = "s14" if which == "q" else "s15"
        e(f"s_add_u32 s12, s93, {cnt}")
        e(f"s_and_b32 s12, s12, {RM}")
        if RM != 15:
            e(f"s_and_b32 s13, {cnt}, {15 - RM}")
            e("s_or_b32 s12, s12, s13")
        if opt.noadv: e("s_mov_b32 s12, 0")
        if which == "q":
            e("s_mul_i32 s12, s12, 917504")
            e("s_add_u32 s28, s8, s12")
            e("s_addc_u32 s29, s9, 0")
        else:
            e("s_lshl_b32 s12, s12, 7")
            e("s_add_u32 s24, s10, s12")
            e("s_addc_u32 s25, s11, 0")
        e(f"s_add_u32 {cnt}, {cnt}, 1")
    def qb(b): return 256 - 32 * NQ + 32 * b
    def issue_x(u, j):
        if j == 0:
            e("s_add_u32 m0, s23, s33")
            set_k("x")
        if j == 4:
            e("s_add_u32 m0, m0, 0x1000")
            e(f"s_add_u32 s33, s33, 0x8000")
            e(f"s_cmp_eq_u32 s33, {NX*32768}")
            e("s_cselect_b32 s33, 0, s33")
        so = "0" if j == 0 else f"s{50+j}"
        if not opt.nox:
            off = (j & 3) * 1024
            e(f"buffer_load_dwordx4 v{80+(j&3)}, s[24:27], {so} offen offset:{off}{opt.xmod} lds")
            S.issue("vm", ("X", u))
    def issue_q(u, j):
        b = u % NQ
        if j == 0: set_k("q")
        r = qb(b) + 4 * j
        so = "0" if j == 0 else f"s{43+j}"
        if not opt.noq:
            e(f"buffer_load_dwordx4 v[{r}:{r+3}], v2, s[28:31], {so} offen{opt.qmod}")
            S.issue("vm", ("Q", u))
    for j in range(8): issue_q(0, j)
    if opt.stamp:
        e("s_mov_b32 s62, s60")
        nstamp[0] = 1
    e("v_and_b32 v12, 3, v11")
    e("v_bfe_u32 v13, v11, 2, 1")
    e("v_lshrrev_b32 v14, 3, v11")
    e("v_lshlrev_b32 v14, 5, v14")
    e("v_lshl_add_u32 v14, v12, 3, v14")
    e("v_lshl_add_u32 v14, v13, 2, v14")
    e("v_lshl_or_b32 v12, v13, 2, v12")
    e("v_xor_b32 v12, v12, v9")
    e("v_lshlrev_b32 v12, 4, v12")
    e("v_lshl_add_u32 v5, v14, 7, v12")
    e(f"v_add_u32 v5, {WRING}, v5")
    e("v_xor_b32 v6, 64, v5")
    e("v_lshlrev_b32 v3, 4, v11")
    e(f"v_add_u32 v3, {STAB}, v3")
    e("v_lshlrev_b32 v4, 5, v9")
    e(f"v_add_u32 v4, {ATAB}, v4")
    e("s_mov_b32 s92, 0")
    nx0 = 0
    nq0 = 1
    for g in opt.pre.split(","):
        if g == "q":
            for j in range(8): issue_q(nq0, j)
            nq0 += 1
    stamp()
    e("s_barrier")
    for g in opt.pro.split(","):
        if g == "q":
            for j in range(8): issue_q(nq0, j)
            nq0 += 1
    TB = [16, 32]
    def tab_read(u):
        r = TB[u & 1]
        e(f"ds_read_b128 v[{r}:{r+3}], v3");                S.issue("lgkm", ("T", u))
        e(f"ds_read_b128 v[{r+4}:{r+7}], v3 offset:8192");  S.issue("lgkm", ("T", u))
        e(f"ds_read_b128 v[{r+8}:{r+11}], v4");             S.issue("lgkm", ("T", u))
        e(f"ds_read_b128 v[{r+12}:{r+15}], v4 offset:16");  S.issue("lgkm", ("T", u))
        e("v_add_u32 v3, 512, v3")
        e("v_add_u32 v4, 256, v4")
    TT = [48, 56]
    DD = [64, 68, 72, 76]
    tab_read(0)
    S.c("ALIGN_ON") if opt.align else None
    ramp = [int(v) for v in opt.ramp.split(",")]
    NH = len(ramp)
    depth = nq0 + sum(ramp) - NH
    NLOOP = NT - depth
    assert (NLOOP - NH) % 4 == 0 and depth <= NQ - 1, (NLOOP, NH, depth)
    nextq = nq0
    for t in range(-1, NT - 1):
        u = t + 1
        b = u % NQ
        tail = u >= NLOOP
        head = u < NH
        S.emit = head or (u < NH + 4) or tail
        if u == NH:
            S.d(".p2align 6")
            S.lab("L_ploop")
        site = ("tail", u) if tail else (("head", u) if head else b)
        S.c(f"producer iteration u%4={b}" + (" (tail)" if tail else " (head)" if head else ""))
        ng = ramp[u] if head else (0 if tail else 1)
        qlist = list(range(nextq, nextq + ng)); nextq += ng
        tb = TB[u & 1]
        vm = [("q", qq, j) for qq in qlist for j in range(8)]
        def do_vm(n):
            for _ in range(n):
                if vm:
                    k, uu, j = vm.pop(0)
                    (issue_x if k == "x" else issue_q)(uu, j)
        if opt.stamp >= 2: e("s_memtime s[60:61]")
        do_vm(opt.burst)
        if u + 1 < NT: tab_read(u + 1)
        S.wait("lgkm", ("T", site), {("T", u)})
        S.wait("vm", ("Q", site), {("Q", u)})
        par = (u & 1) * 16384
        total = len(vm)
        slot = [0]; issued = [0]
        nsl = opt.nsl
        def slot_vm():
            slot[0] += 1
            k = slot[0] - opt.qs0
            target = 0 if k <= 0 else min(total, (total * k + nsl - 1) // nsl)
            n = target - issued[0]
            if n > 0:
                do_vm(n); issued[0] += n
        def wr(c):
            if opt.nodq or opt.nowr: return
            a = "v5" if c < 2 else "v6"
            e(f"ds_write_b128 {a}, v[{DD[c]}:{DD[c]+3}] offset:{par + c*128}")
            S.issue("lgkm", ("W", u))
        for c in range(4):
            T = TT[c & 1]
            if not opt.nodq:
                for j in range(8):
                    q = qb(b) + 4 * j + c
                    e(f"v_fma_mix_f32 v{T+j}, v{q}, v{tb+c}, v{tb+4+c} op_sel_hi:[1,0,0]")
                    if j == 3: slot_vm()
            else:
                slot_vm()
            slot_vm()
            if opt.wrpos == 1:
                if c == 2: wr(0)
                if c == 3: wr(2)
            if not opt.nodq:
                for j in range(8):
                    e(f"v_mul_f32_e64 v{T+j}, v{T+j}, v{tb+8+j}")
            slot_vm()
            if opt.wrpos == 1 and c == 2: wr(1)
            if not opt.nodq:
                for i in range(4):
                    e(f"v_cvt_pk_bf16_f32 v{DD[c]+i}, v{T+2*i}, v{T+2*i+1}")
            if opt.wrpos == 0: wr(c)
            if opt.wrpos == 1 and c == 3: wr(3)
            if opt.wrpos == 2 and c == 3:
                for cc in range(4): wr(cc)
            slot_vm()
        do_vm(99)
        S.wait("lgkm", ("W", site), {("W", u)})
        if opt.stamp >= 2:
            e("s_waitcnt lgkmcnt(0)")
            e("s_mov_b32 m0, s92"); e("s_nop 0"); e("v_writelane_b32 v100, s60, m0")
            e("s_add_u32 s92, s92, 1")
        e("s_barrier")
        if not tail and not head and (u - NH) % 4 == 3:
            e(f"s_cmp_lt_u32 s14, {NT}")
            e("s_cbranch_scc1 L_ploop")
    S.emit = True
    S.c("ALIGN_OFF")
    if opt.stamp:
        if opt.stamp >= 2:
            e("s_memtime s[60:61]")
            e("s_waitcnt lgkmcnt(0)")
            e("s_mov_b32 m0, s92"); e("s_nop 0"); e("v_writelane_b32 v100, s60, m0")
            e("s_lshl_b32 s56, s2, 11")
            e("s_lshl_b32 s57, s18, 8")
            e("s_add_u32 s56, s56, s57")
            e("s_add_u32 s56, s56, 128")
            e("s_add_u32 s56, s58, s56")
            e("s_addc_u32 s57, s59, 0")
            e("v_lshlrev_b32 v101, 2, v7")
            e("v_cmp_gt_u32 vcc, 32, v7")
            e("s_and_saveexec_b64 s[44:45], vcc")
            e("global_store_dword v101, v100, s[56:57]")
            e("s_mov_b64 exec, s[44:45]")
        stamp()
        stamp_store(e, 8, 62)
    S.lab("L_end")
    e("s_endpgm")
    if NPF:
        S.lab("L_prefetch")
        if opt.pf == 2:
            e("s_load_dwordx2 s[4:5], s[0:1], 0")
            e("v_lshrrev_b32 v1, 6, v0")
            e("v_and_b32 v7, 63, v0")
            e("s_and_b32 s16, s2, 7")
            e("v_readfirstlane_b32 s18, v1")
            e(f"s_sub_u32 s17, s2, {0 if opt.pffirst else NWG}")
            e("s_lshr_b32 s17, s17, 3")
            e("s_and_b32 s19, s16, 1")
            e("s_lshl_b32 s19, s19, 2")
            e("s_add_u32 s19, s19, s17")
            e(f"s_mul_i32 s93, s17, {opt.rm}")
            e(f"s_and_b32 s93, s93, {RM}")
            e("s_and_b32 s20, s18, 3")
            e("s_lshr_b32 s21, s18, 2")
            e("s_lshl_b32 s20, s20, 6")
            e("v_add_u32 v2, s20, v7")
            e("v_lshlrev_b32 v2, 11, v2")
            e("s_lshl_b32 s22, s19, 19")
            e("s_mov_b32 s26, 522368")
            e("s_mov_b32 s27, 0x20000")
            e(f"s_add_u32 s6, s21, {opt.pf0}")
            e("s_waitcnt lgkmcnt(0)")
            e("s_add_u32 s4, s4, s22")
            e("s_addc_u32 s5, s5, 0")
            e("s_and_b32 s5, s5, 0xffff")
            S.lab("L_pfx")
            e("s_add_u32 s12, s93, s6")
            e(f"s_and_b32 s12, s12, {RM}")
            e(f"s_and_b32 s13, s6, {15 - RM}")
            e("s_or_b32 s12, s12, s13")
            e("s_lshl_b32 s12, s12, 7")
            e("s_add_u32 s24, s4, s12")
            e("s_addc_u32 s25, s5, 0")
            e("buffer_load_dword v8, v2, s[24:27], 0 offen")
            e("s_add_u32 s6, s6, 2")
            e(f"s_cmp_lt_u32 s6, {NT}")
            e("s_cbranch_scc1 L_pfx")
            e("s_endpgm")
        if opt.pf == 1:
            e("s_load_dwordx2 s[6:7], s[0:1], 8")
            e("v_lshrrev_b32 v1, 6, v0")
            e("v_and_b32 v7, 63, v0")
            e("s_and_b32 s16, s2, 7")
            e("v_readfirstlane_b32 s18, v1")
            e(f"s_sub_u32 s17, s2, {0 if opt.pffirst else NWG}")
            e("s_lshr_b32 s17, s17, 3")
            e("s_cmp_ge_u32 s18, 7")
            e("s_cbranch_scc1 L_end")
            e("s_lshr_b32 s20, s16, 1")
            e("s_mul_i32 s20, s20, 7")
            e("s_add_u32 s20, s20, s18")
            e(f"s_mul_i32 s21, s17, {opt.rm}")
            e(f"s_mul_i32 s22, s18, {opt.rn}")
            e("s_add_u32 s21, s21, s22")
            e("s_add_u32 s21, s21, 1")
            e(f"s_and_b32 s21, s21, {RM}")
            e("v_mul_u32_u24 v2, 14336, v7")
            e("s_lshl_b32 s22, s20, 9")
            e("s_mov_b32 s30, 903680")
            e("s_mov_b32 s31, 0x20000")
            e("s_waitcnt lgkmcnt(0)")
            e("s_add_u32 s8, s6, s22")
            e("s_addc_u32 s9, s7, 0")
            e("s_and_b32 s9, s9, 0xffff")
            phases = []
            if opt.pfa: phases.append(("A", 0))
            phases.append(("B", 8))
            for name, add in phases:
                if name == "A":
                    e(f"s_cmp_ge_u32 s18, {opt.pfa}")
                    e("s_cbranch_scc1 L_pfB")
                else:
                    S.lab("L_pfB")
                e(f"s_add_u32 s12, s21, {add}")
                e("s_mul_i32 s12, s12, 917504")
                e("s_add_u32 s28, s8, s12")
                e("s_addc_u32 s29, s9, 0")
                for i in range(4):
                    e(f"buffer_load_dword v{8+i}, v2, s[28:31], 0 offen offset:{i*128}")
            e("s_endpgm")


    hdr = HEADER + f"; @launch grid=({NWG + NPF},1,1) block=(512,1,1) lds={LDS}\n"
    pre = f""".amdgcn_target "amdgcn-amd-amdhsa--gfx950"
.text
.globl {KNAME}
.p2align 8
.type {KNAME},@function
{KNAME}:
"""
    post = f""".section .rodata,"a"
.p2align 6
.amdhsa_kernel {KNAME}
  .amdhsa_next_free_vgpr 256
  .amdhsa_next_free_sgpr 96
  .amdhsa_accum_offset 256
  .amdhsa_group_segment_fixed_size 0
  .amdhsa_kernarg_size 64
  .amdhsa_user_sgpr_count 2
  .amdhsa_user_sgpr_kernarg_segment_ptr 1
  .amdhsa_system_sgpr_workgroup_id_x 1
.end_amdhsa_kernel
"""
    return hdr + pre + "\n".join(S.resolve()) + "\n" + post

def parse(argv=None):
    ap = argparse.ArgumentParser()
    ap.add_argument("-o", default="k.s")
    ap.add_argument("--stamp", type=int, default=0)
    for f in ("nomfma", "nodq", "nox", "noq", "noc", "noadv", "nowr", "fake16"):
        ap.add_argument("--" + f, action="store_true")
    ap.add_argument("--xpos", default="6,7")
    ap.add_argument("--nsl", type=int, default=16)
    ap.add_argument("--qs0", type=int, default=0)
    ap.add_argument("--xph", default="0,1,2,3")
    ap.add_argument("--pf", type=int, default=0)
    ap.add_argument("--pfa", type=int, default=4)
    ap.add_argument("--epo", type=int, default=0)
    ap.add_argument("--pre", default="")
    ap.add_argument("--pf0", type=int, default=1)
    ap.add_argument("--pffirst", type=int, default=0)
    ap.add_argument("--ramp", default="1,2")
    ap.add_argument("--pro", default="")
    ap.add_argument("--align", type=int, default=1)
    ap.add_argument("--cprio", type=int, default=3)
    ap.add_argument("--pprio", type=int, default=0)
    ap.add_argument("--rotn", type=int, default=8)
    ap.add_argument("--rm", type=int, default=2)
    ap.add_argument("--rn", type=int, default=1)
    ap.add_argument("--wrpos", type=int, default=0)
    ap.add_argument("--burst", type=int, default=0)
    ap.add_argument("--rpm", type=int, default=1)
    ap.add_argument("--stmod", default="nt")
    ap.add_argument("--qmod", default="")
    ap.add_argument("--xmod", default="")
    opt = ap.parse_args(argv)
    for k in ("stmod", "qmod", "xmod"):
        v = getattr(opt, k)
        if v: setattr(opt, k, " " + v)
    return opt

if __name__ == "__main__":
    opt = parse()
    open(opt.o, "w").write(gen(opt))
```

```python
import sys, argparse, re

KNAME = "standalone__weight_only_int_omniquant__prompt_kernel"
HEADER = """; Kernarg layout for this problem (64 bytes, ptrs only, base s[0:1]):
;
;   waves 0-3: MFMA consumers (128x64 each, v_mfma_f32_32x32x16_bf16, D = W'^T x^T)
"""
NT = 16

def isize(line):
    s = line.strip()
    if not s or s.startswith(";") or s.endswith(":") or s.startswith("."): return 0
    s = s.split(";")[0].strip()
    op = s.split()[0]
    args = s[len(op):]
    def has_lit():
        for tok in re.split(r"[,\s]+", args):
            tok = tok.strip()
            if not tok: continue
            if re.fullmatch(r"-?(0x[0-9a-fA-F]+|\d+)", tok):
                v = int(tok, 0)
                if v < -16 or v > 64: return True
            elif re.fullmatch(r"L_\w+-\w+", tok): return True
        return False
    if op.startswith(("ds_", "buffer_", "global_", "flat_", "s_load", "s_memtime", "s_memrealtime", "v_mfma", "v_pk_", "v_fma_mix")): return 8
    if op in ("s_waitcnt", "s_barrier", "s_nop", "s_endpgm", "s_setprio", "s_branch", "s_sleep") or op.startswith("s_cbranch"): return 4
    if op.startswith("s_"):
        if op in ("s_movk_i32", "s_addk_i32", "s_mulk_i32"): return 4
        return 8 if has_lit() else 4
    if op.startswith("v_"):
        vop3 = ("v_fma_f32", "v_cvt_pk_bf16_f32", "v_lshl_add_u32", "v_lshl_or_b32", "v_mul_lo_u32", "v_bfe_u32", "v_add3_u32", "v_perm_b32", "v_and_or_b32", "v_readlane_b32", "v_writelane_b32", "v_cmp_gt_u32")
        if op in vop3 or op.endswith("_e64"): return 8
        return 8 if has_lit() else 4
    raise ValueError(line)

class Stream:
    def __init__(self):
        self.L = []
        self.sites = {}
        self.emit = True
        self.maxn = {"vm": 63, "lgkm": 15}
        self.reset()
    def reset(self):
        self.q = {"vm": [], "lgkm": []}
    def e(self, s):
        if self.emit: self.L.append("    " + s)
    def lab(self, s):
        if self.emit: self.L.append(s + ":")
    def c(self, s):
        if self.emit: self.L.append("    ; " + s)
    def d(self, s):
        if self.emit: self.L.append(s)
    def issue(self, ctr, tag): self.q[ctr].append(tag)
    def wait(self, ctr, site, tags):
        q = self.q[ctr]
        last = -1
        for i, t in enumerate(q):
            if t in tags: last = i
        n = self.maxn[ctr] if last < 0 else min(len(q) - 1 - last, self.maxn[ctr])
        key = (ctr, site)
        self.sites[key] = min(self.sites.get(key, 99), n)
        if self.emit: self.L.append(("wait", key))
    def waitall(self, ctr):
        self.q[ctr] = []
        self.e(f"s_waitcnt {'vmcnt' if ctr=='vm' else 'lgkmcnt'}(0)")
    def resolve(self, align_regions=True):
        out = []
        for s in self.L:
            if isinstance(s, tuple):
                ctr, site = s[1]
                n = self.sites[s[1]]
                if n >= self.maxn[ctr]: continue
                out.append(f"    s_waitcnt {'vmcnt' if ctr=='vm' else 'lgkmcnt'}({n})")
            else:
                out.append(s)
        res = []
        off = 0
        on = False
        for s in out:
            t = s.strip()
            if t == "; ALIGN_ON": on = True
            if t == "; ALIGN_OFF": on = False
            if t.startswith(".p2align"):
                a = 1 << int(t.split()[1].rstrip(","))
                off = (off + a - 1) // a * a
                res.append(s); continue
            sz = isize(s)
            if on and sz == 8 and off % 8 == 4:
                res.append("    s_nop 0"); off += 4
            res.append(s); off += sz
        return res

def stamp_store(e, nst, first):
    e("s_waitcnt lgkmcnt(0)")
    e("s_lshl_b32 s56, s2, 11")
    e("s_lshl_b32 s57, s18, 8")
    e("s_add_u32 s56, s56, s57")
    e("s_add_u32 s58, s58, s56")
    e("s_addc_u32 s59, s59, 0")
    e("s_mov_b64 exec, 1")
    e("v_mov_b32 v24, 0")
    for i in range(nst):
        e(f"v_mov_b32 v16, s{first+i}")
        e(f"global_store_dword v24, v16, s[58:59] offset:{4*i}")

def gen(opt):
    NWG = 224
    NX = 3
    NQ = 4
    XRING = 0
    WRING = NX * 32768
    STAB = WRING + 32768
    ZTAB = STAB + 8192
    ATAB = ZTAB + 8192
    LDS = ATAB + 4096 + 512
    EPI = 32768
    S = Stream()
    e = S.e
    nstamp = [0]
    def stamp():
        if not opt.stamp: return
        e("s_memrealtime s[60:61]")
        e("s_waitcnt lgkmcnt(0)")
        e(f"s_mov_b32 s{62+nstamp[0]}, s60")
        nstamp[0] += 1
    RM = opt.rotn - 1
    NPF = 32 if opt.pf else 0
    e(f"s_cmp_ge_u32 s2, {NWG + NPF}")
    e("s_cbranch_scc1 L_end")
    if NPF and opt.pffirst:
        e(f"s_cmp_lt_u32 s2, {NPF}")
        e("s_cbranch_scc1 L_prefetch")
        e(f"s_sub_u32 s2, s2, {NPF}")
    elif NPF:
        e(f"s_cmp_ge_u32 s2, {NWG}")
        e("s_cbranch_scc1 L_prefetch")
    if opt.stamp:
        e("s_memrealtime s[60:61]")
    e("s_load_dwordx8 s[4:11], s[0:1], 0")
    e("s_load_dwordx4 s[12:15], s[0:1], 32")
    if opt.stamp:
        e("s_load_dwordx2 s[58:59], s[0:1], 56")
    e("v_lshrrev_b32 v1, 6, v0")
    e("s_and_b32 s16, s2, 7")
    e("s_lshr_b32 s17, s2, 3")
    e("v_readfirstlane_b32 s18, v1")
    e("s_and_b32 s19, s16, 1")
    e("s_lshl_b32 s19, s19, 2")
    e("s_and_b32 s20, s17, 3")
    e("s_lshr_b32 s21, s17, 2")
    e(f"s_mul_i32 s93, s20, {opt.rm}")
    e("s_add_u32 s19, s19, s20")
    e("s_lshr_b32 s20, s16, 1")
    e("s_mul_i32 s20, s20, 7")
    e("s_add_u32 s20, s20, s21")
    e(f"s_mul_i32 s21, s21, {opt.rn}")
    e("s_add_u32 s93, s93, s21")
    if opt.rx:
        e("s_and_b32 s21, s16, 1")
        e(f"s_mul_i32 s21, s21, {opt.rx}")
        e("s_add_u32 s93, s93, s21")
    e(f"s_and_b32 s93, s93, {RM}")
    e("v_and_b32 v7, 63, v0")
    e("s_cmp_ge_u32 s18, 4")
    e("s_cbranch_scc1 L_producer")

    S.c("consumer waves")
    e(f"s_setprio {opt.cprio}")
    e("v_lshrrev_b32 v12, 4, v0")
    e("v_and_b32 v13, 15, v0")
    e("v_mul_u32_u24 v14, 7168, v12")
    e("v_lshl_add_u32 v14, v13, 4, v14")
    e("v_lshlrev_b32 v15, 3, v0")
    e("s_lshl_b32 s23, s20, 8")
    e("s_sub_u32 s34, 114688, s23")
    e("s_mov_b32 s35, 0x20000")
    e("s_mov_b32 s38, s34")
    e("s_mov_b32 s39, 0x20000")
    e("s_mov_b32 s42, 2048")
    e("s_mov_b32 s43, 0x20000")
    e("s_waitcnt lgkmcnt(0)")
    e("s_add_u32 s32, s8, s23")
    e("s_addc_u32 s33, s9, 0")
    e("s_and_b32 s33, s33, 0xffff")
    e("s_add_u32 s36, s10, s23")
    e("s_addc_u32 s37, s11, 0")
    e("s_and_b32 s37, s37, 0xffff")
    e("s_mov_b32 s40, s12")
    e("s_and_b32 s41, s13, 0xffff")
    e("buffer_load_dwordx4 v[16:19], v14, s[32:35], 0 offen")
    e("buffer_load_dwordx4 v[20:23], v14, s[36:39], 0 offen")
    e("buffer_load_dwordx2 v[24:25], v15, s[40:43], 0 offen")
    e("v_lshrrev_b32 v8, 3, v7")
    e("s_lshl_b32 s23, s18, 6")
    e("v_add_u32 v8, s23, v8")
    e("v_lshrrev_b32 v9, 5, v7")
    e("v_lshrrev_b32 v10, 4, v7")
    e("v_xor_b32 v10, v9, v10")
    e("v_and_b32 v10, 1, v10")
    e("v_lshlrev_b32 v10, 2, v10")
    e("v_and_b32 v11, 7, v7")
    e("v_xor_b32 v10, v10, v11")
    e("v_lshlrev_b32 v10, 4, v10")
    e("v_lshl_add_u32 v112, v8, 11, v10")
    for jj in range(1, 4):
        e(f"v_xor_b32 v{112+jj}, {jj<<4}, v112")
    for j in range(1, 8):
        e(f"s_mov_b32 s{47+j}, {j*16384 - (j&3)*1024}")
    e("s_lshl_b32 s55, s18, 13")
    e("s_lshl_b32 s23, s19, 19")
    e("s_add_u32 s4, s4, s23")
    e("s_addc_u32 s5, s5, 0")
    e("s_and_b32 s5, s5, 0xffff")
    e("s_mov_b32 s10, 522368")
    e("s_mov_b32 s11, 0x20000")
    e("s_mov_b32 s6, 0")
    e("s_mov_b32 s7, 0")
    def cx_set():
        e("s_add_u32 m0, s55, s7")
        e("s_add_u32 s12, s93, s6")
        e(f"s_and_b32 s12, s12, {RM}")
        if RM != 15:
            e(f"s_and_b32 s13, s6, {15 - RM}")
            e("s_or_b32 s12, s12, s13")
        if opt.noadv: e("s_mov_b32 s12, 0")
        e("s_lshl_b32 s12, s12, 7")
        e("s_add_u32 s8, s4, s12")
        e("s_addc_u32 s9, s5, 0")
        e("s_add_u32 s6, s6, 1")
    def cx_issue(u, j):
        if j == 0: cx_set()
        if j == 4:
            e("s_add_u32 m0, m0, 0x1000")
            e("s_add_u32 s7, s7, 0x8000")
            e(f"s_cmp_eq_u32 s7, {NX*32768}")
            e("s_cselect_b32 s7, 0, s7")
        so = "0" if j == 0 else f"s{47+j}"
        if not opt.nox:
            e(f"buffer_load_dwordx4 v{112+(j&3)}, s[8:11], {so} offen offset:{(j&3)*1024}{opt.xmod} lds")
            S.issue("vm", ("X", u))
    for j in range(8): cx_issue(0, j)
    if opt.stamp:
        e("s_mov_b32 s62, s60")
        nstamp[0] = 1
    e("s_and_b32 s21, s18, 1")
    e("s_lshr_b32 s22, s18, 1")
    e("v_and_b32 v10, 31, v7")
    e("v_lshrrev_b32 v11, 5, v7")
    e("v_lshrrev_b32 v2, 3, v10")
    e("v_lshrrev_b32 v3, 2, v10")
    e("v_lshrrev_b32 v4, 1, v10")
    e("v_xor_b32 v3, v3, v4")
    e("v_and_b32 v3, 1, v3")
    e("v_lshl_or_b32 v2, v3, 2, v2")
    e("v_xor_b32 v2, v2, v11")
    e("v_lshlrev_b32 v2, 4, v2")
    e("v_lshl_add_u32 v9, v10, 7, v2")
    e("s_lshl_b32 s23, s21, 14")
    e("s_lshl_b32 s24, s22, 13")
    e(f"s_add_u32 s24, s24, {WRING}")
    XA = [2, 3, 4, 5]
    WA = [64, 65, 66, 67]
    for ks in range(4):
        e(f"v_xor_b32 v8, {ks*32}, v9")
        e(f"v_add_u32 v{XA[ks]}, s23, v8")
        e(f"v_add_u32 v{WA[ks]}, s24, v8")
    for r in range(128, 256):
        e(f"v_mov_b32 v{r}, 0")
    e("s_mov_b32 s31, 0xffff0000")
    e("s_mov_b32 s30, 0x4b800000")
    e("v_subrev_u32 v74, s93, v12")
    e(f"v_and_b32 v74, {RM}, v74")
    if RM != 15:
        e(f"v_and_b32 v75, {15 - RM}, v12")
        e("v_or_b32 v74, v74, v75")
    e("v_lshlrev_b32 v72, 9, v74")
    e("v_lshl_add_u32 v72, v13, 5, v72")
    e(f"v_add_u32 v72, {STAB}, v72")
    e("v_lshlrev_b32 v73, 8, v74")
    e("v_lshl_add_u32 v73, v13, 4, v73")
    e(f"v_add_u32 v73, {ATAB}, v73")
    e("s_waitcnt vmcnt(%d)" % (0 if opt.nox else 8))
    for d in range(4):
        e(f"v_lshlrev_b32 v{80+2*d}, 16, v{16+d}")
        e(f"v_and_b32 v{81+2*d}, s31, v{16+d}")
        e(f"v_lshlrev_b32 v{88+2*d}, 16, v{20+d}")
        e(f"v_and_b32 v{89+2*d}, s31, v{20+d}")
    for d in range(8):
        e(f"v_mul_f32_e64 v{88+d}, -v{88+d}, v{80+d}")
    for d in range(8):
        e(f"v_mul_f32 v{80+d}, s30, v{80+d}")
    for d in range(2):
        e(f"v_lshlrev_b32 v{96+2*d}, 16, v{24+d}")
        e(f"v_and_b32 v{97+2*d}, s31, v{24+d}")
    e("ds_write_b128 v72, v[80:83]")
    e("ds_write_b128 v72, v[84:87] offset:16")
    e("ds_write_b128 v72, v[88:91] offset:8192")
    e("ds_write_b128 v72, v[92:95] offset:8208")
    e("ds_write_b128 v73, v[96:99]")
    e("s_lshl_b32 s25, s19, 8")
    e("s_lshl_b32 s26, s21, 7")
    e("s_add_u32 s25, s25, s26")
    e("s_mul_i32 s25, s25, 7168")
    e("s_lshl_b32 s26, s20, 8")
    e("s_lshl_b32 s27, s22, 7")
    e("s_add_u32 s26, s26, s27")
    e("s_add_u32 s25, s25, s26")
    e("s_add_u32 s40, s14, s25")
    e("s_addc_u32 s41, s15, 0")
    e("s_and_b32 s41, s41, 0xffff")
    e("s_sub_u32 s42, 14680064, s25")
    e("s_mov_b32 s43, 0x20000")
    e("v_and_b32 v12, 7, v10")
    e("v_lshlrev_b32 v13, 1, v11")
    e("v_xor_b32 v12, v12, v13")
    e("v_lshlrev_b32 v12, 4, v12")
    e("v_lshl_add_u32 v12, v10, 7, v12")
    e("s_lshl_b32 s26, s18, 14")
    e(f"s_add_u32 s26, s26, {EPI}")
    e("v_add_u32 v12, s26, v12")
    EW = [72, 73, 74, 75]
    e("s_waitcnt lgkmcnt(0)")
    for tn in range(2):
        for q in range(2):
            e(f"v_xor_b32 v{EW[tn*2+q]}, {(4*tn+q)<<4}, v12")
    e("v_lshrrev_b32 v13, 3, v7")
    e("v_and_b32 v14, 7, v7")
    e("v_xor_b32 v15, v14, v13")
    e("v_lshlrev_b32 v15, 4, v15")
    e("v_lshl_add_u32 v15, v13, 7, v15")
    e("v_add_u32 v76, s26, v15")
    e("v_mul_u32_u24 v77, 7168, v13")
    e("v_lshl_add_u32 v77, v14, 4, v77")
    e("s_mov_b32 s28, 0")
    e("s_mov_b32 s29, 0")
    e("s_mov_b32 s44, 0x8000")
    e("s_mov_b32 s45, 0xffff0000")
    e("s_barrier")
    stamp()
    for j in range(8): cx_issue(1, j)
    F = [dict(x=[16, 20, 24, 28], w=[32, 36]), dict(x=[40, 44, 48, 52], w=[56, 60])]
    def acc(tn, tm):
        b = 128 + (tn * 4 + tm) * 16
        return f"v[{b}:{b+15}]"
    def rd(buf, kind, idx, t, ks):
        if opt.noc: return
        if kind == "x":
            r = F[buf]["x"][idx]
            e(f"ds_read_b128 v[{r}:{r+3}], v{XA[ks]} offset:{idx*4096}")
        else:
            r = F[buf]["w"][idx]; off = idx * 4096 + (t & 1) * 16384
            e(f"ds_read_b128 v[{r}:{r+3}], v{WA[ks]} offset:{off}")
        S.issue("lgkm", (t, ks, kind, idx))
    order = [("w", 0), ("x", 0), ("x", 1), ("x", 2), ("x", 3), ("w", 1)]
    def phase(mf, rdspec, site, tm_major=False, after=None, xd=None):
        if tm_major: mfs = [(tn, tm) for tm in range(4) for tn in range(2)]
        else: mfs = [(tn, tm) for tn in range(2) for tm in range(4)]
        reads = list(order) if rdspec else []
        ri = 0
        for mi, (tn, tm) in enumerate(mfs):
            for _ in range(opt.rpm):
                if ri < len(reads):
                    kind, idx = reads[ri]; ri += 1
                    rd(rdspec[2], kind, idx, rdspec[0], rdspec[1])
            t, ks, buf = mf
            if mi <= 4: S.wait("lgkm", (site, mi), {(t, ks, "w", tn), (t, ks, "x", tm)})
            if not opt.nomfma:
                xr = F[buf]["x"][tm]; wr = F[buf]["w"][tn]
                if opt.fake16:
                    b0 = 128 + (tn * 4 + tm) * 16 + (ks & 1) * 8
                    xr2 = F[buf]["x"][(tm + 1) % 4]
                    e(f"v_mfma_f32_16x16x32_bf16 v[{b0}:{b0+3}], v[{wr}:{wr+3}], v[{xr}:{xr+3}], v[{b0}:{b0+3}]")
                    e(f"v_mfma_f32_16x16x32_bf16 v[{b0+4}:{b0+7}], v[{wr}:{wr+3}], v[{xr2}:{xr2+3}], v[{b0+4}:{b0+7}]")
                else:
                    e(f"v_mfma_f32_32x32x16_bf16 {acc(tn,tm)}, v[{wr}:{wr+3}], v[{xr}:{xr+3}], {acc(tn,tm)}")
            if after and mi == 6: after()
            if xd and mi in xd[1]:
                if xd[2]: cx_issue(xd[0], xd[2].pop(0))
    def advance_stage():
        e("s_cmp_eq_u32 s29, 2")
        e("s_cselect_b32 s46, s45, s44")
        e("s_cselect_b32 s47, -1, s29")
        e("s_add_u32 s29, s47, 1")
        for ks in range(4):
            e(f"v_add_u32 v{XA[ks]}, s46, v{XA[ks]}")
    e("s_waitcnt vmcnt(%d)" % (0 if opt.nox else 8))
    e("s_barrier")
    if opt.stamp:
        e("s_memtime s[88:89]")
        stamp()
        e("s_mov_b32 s86, s88")
    for kind, idx in order: rd(0, kind, idx, 0, 0)
    _q = list(S.q["vm"])
    n0 = len(opt.xpos.split(",")) if "0" in opt.xph.split(",") else 0
    for jj in range(n0): cx_issue(2, jj)
    S.q["vm"] = _q
    e("s_branch L_cB0")
    S.d(".p2align 6")
    S.lab("L_cloop")
    S.emit = True
    saveL = S.L
    body = {}
    xpos = [int(v) for v in opt.xpos.split(",")]
    for t in range(NT):
        par = t & 1
        tail = t >= NT - 2
        site0 = ("tail", par) if tail else par
        S.L = []
        S.emit = True
        js = list(range(8))
        xd = None if tail else (t + 2, xpos, js)
        xph = [int(v) for v in opt.xph.split(",")]
        def xdp(p): return xd if p in xph else None
        if opt.epo and t == NT - 1:
            body[t] = []
            continue
        if t > 0:
            S.wait("vm", ("X", site0), {("X", t)})
            S.waitall("lgkm")
            e("s_barrier")
            phase((t-1, 3, 1), (t, 0, 0), (site0, 0), xd=xdp(0))
        else:
            saveL_extra = []
        if par == 0 and not tail: S.lab("L_cB0")
        if t == 0:
            for _ in range(n0):
                js.pop(0); S.issue("vm", ("X", 2))
        phase((t, 0, 0), (t, 1, 1), (site0, 1), xd=xdp(1))
        phase((t, 1, 1), (t, 2, 0), (site0, 2), xd=xdp(2))
        phase((t, 2, 0), (t, 3, 1), (site0, 3), after=advance_stage, xd=xdp(3))
        if par == 1 and not tail:
            e("s_add_u32 s28, s28, 1")
            e(f"s_cmp_lt_u32 s28, {NT//2 - 1}")
            e("s_cbranch_scc1 L_cloop")
        if t in (2, 3, NT - 2, NT - 1): body[t] = S.L
    S.L = saveL + body[2] + body[3] + body[NT - 2] + body[NT - 1]
    if not opt.epo:
        S.waitall("lgkm")
        phase((NT-1, 3, 1), None, ("fin", 0), tm_major=True)
        if opt.stamp:
            e("s_memtime s[88:89]")
            nstamp[0] = 20
            stamp()
            e("s_mov_b32 s87, s88")
        S.c("epilogue")
        S.reset()
        T = 80
        R = 16
        e("s_mov_b32 s27, 0")
        sidx = [0]
        def store(it):
            rr = R + (it % 8) * 4
            S.wait("lgkm", ("st", it), {("R", it)})
            e(f"buffer_store_dwordx4 v[{rr}:{rr+3}], v77, s[40:43], s27 offen{opt.stmod}")
            e(f"s_add_u32 s27, s27, 57344")
        if opt.stamp: e("s_nop 7")
        for tm in range(4):
            for tn in range(2):
                b = 128 + (tn * 4 + tm) * 16
                tb = T + ((tm * 2 + tn) % 4) * 8
                if tm == 3 and tn == 0 and not opt.stamp: e("s_nop 3")
                for d in range(8):
                    e(f"v_cvt_pk_bf16_f32 v{tb+d}, v{b+2*d}, v{b+2*d+1}")
                for q in range(2):
                    e(f"ds_write_b128 v{EW[tn*2+q]}, v[{tb+4*q}:{tb+4*q+3}] offset:{tm*4096}")
                    S.issue("lgkm", ("EWr", tm))
                if tm > 0:
                    store((tm - 1) * 4 + tn * 2); store((tm - 1) * 4 + tn * 2 + 1)
            for k in range(4):
                it = tm * 4 + k
                r = R + (it % 8) * 4
                e(f"ds_read_b128 v[{r}:{r+3}], v76 offset:{it*1024}")
                S.issue("lgkm", ("R", it))
        for it in range(12, 16): store(it)
    else:
        S.c("last K step: accumulators finish row block by row block; the epilogue overlaps the MFMAs")
        t = NT - 1
        e("s_waitcnt vmcnt(0)")
        S.waitall("lgkm")
        S.reset()
        e("s_barrier")
        W15 = {(ks, tn): 96 + (ks * 2 + tn) * 4 for ks in range(4) for tn in range(2)}
        XB = [[16 + 4 * ks for ks in range(4)], [40 + 4 * ks for ks in range(4)]]
        SR = [32, 36, 56, 60]
        TC = [80, 88]
        def rw(ks, tn):
            r = W15[(ks, tn)]
            e(f"ds_read_b128 v[{r}:{r+3}], v{WA[ks]} offset:{tn*4096 + (t & 1)*16384}")
            S.issue("lgkm", ("w", ks, tn))
        def rx(tm, ks):
            r = XB[tm & 1][ks]
            e(f"ds_read_b128 v[{r}:{r+3}], v{XA[ks]} offset:{tm*4096}")
            S.issue("lgkm", ("x", tm, ks))
        def cvt(tm, tn, d):
            b_ = 128 + (tn * 4 + tm) * 16
            e(f"v_cvt_pk_bf16_f32 v{TC[tn]+d}, v{b_+2*d}, v{b_+2*d+1}")
        def ewr(tm, tn, q):
            e(f"ds_write_b128 v{EW[tn*2+q]}, v[{TC[tn]+4*q}:{TC[tn]+4*q+3}] offset:{tm*4096}")
            S.issue("lgkm", ("EWr", tm))
        def erd(tm, k):
            it = tm * 4 + k
            e(f"ds_read_b128 v[{SR[k]}:{SR[k]+3}], v76 offset:{it*1024}")
            S.issue("lgkm", ("R", it))
        def est(tm, k):
            it = tm * 4 + k
            S.wait("lgkm", ("st", it), {("R", it)})
            e(f"buffer_store_dwordx4 v[{SR[k]}:{SR[k]+3}], v77, s[40:43], s27 offen{opt.stmod}")
            e(f"s_add_u32 s27, s27, 57344")
        def epi_list(tm):
            fl = []
            for tn in range(2):
                for d in range(8): fl.append(lambda tn=tn, d=d: cvt(tm, tn, d))
                for q in range(2): fl.append(lambda tn=tn, q=q: ewr(tm, tn, q))
            for k in range(4): fl.append(lambda k=k: erd(tm, k))
            return fl
        def run_block(mfmas, early, late):
            n = len(mfmas)
            for i, mf in enumerate(mfmas):
                mf()
                rem = n - i
                k = -(-len(early) // max(1, min(rem, 2))) if i < 2 else len(early)
                for _ in range(min(k, len(early))): early.pop(0)()
                if i >= 2:
                    k = -(-len(late) // rem)
                    for _ in range(min(k, len(late))): late.pop(0)()
            for f in early + late: f()
        e("s_mov_b32 s27, 0")
        mf = []
        for tn in range(2):
            for tm in range(4):
                xr = F[1]["x"][tm]; wr = F[1]["w"][tn]
                mf.append(lambda tn=tn, tm=tm, xr=xr, wr=wr: e(f"v_mfma_f32_32x32x16_bf16 {acc(tn,tm)}, v[{wr}:{wr+3}], v[{xr}:{xr+3}], {acc(tn,tm)}"))
        rds = []
        for ks in range(4):
            rds += [lambda ks=ks: rw(ks, 0), lambda ks=ks: rx(0, ks), lambda ks=ks: rw(ks, 1)]
        for i, m_ in enumerate(mf):
            m_()
            for _ in range(2 if i < 4 else 1):
                if rds: rds.pop(0)()
        for f in rds: f()
        for tm in range(4):
            mf = []
            for ks in range(4):
                for tn in range(2):
                    def m_(ks=ks, tn=tn, tm=tm):
                        S.wait("lgkm", ("ep", tm, ks, tn), {("w", ks, tn), ("x", tm, ks)})
                        xr = XB[tm & 1][ks]; wr = W15[(ks, tn)]
                        e(f"v_mfma_f32_32x32x16_bf16 {acc(tn,tm)}, v[{wr}:{wr+3}], v[{xr}:{xr+3}], {acc(tn,tm)}")
                    mf.append(m_)
            early = []
            if tm + 1 < 4: early += [lambda ks=ks: rx(tm + 1, ks) for ks in range(4)]
            if tm >= 2: early += [lambda k=k: est(tm - 2, k) for k in range(4)]
            late = epi_list(tm - 1) if tm >= 1 else []
            run_block(mf, early, late)
        if opt.stamp:
            e("s_memtime s[88:89]")
            nstamp[0] = 20
            stamp()
            e("s_mov_b32 s87, s88")
        for k in range(4): est(2, k)
        e("s_nop 7")
        for f in epi_list(3): f()
        for k in range(4): est(3, k)
    if opt.stamp:
        stamp()
        e("s_waitcnt vmcnt(0)")
        stamp()
        stamp_store(e, 26, 62)
    e("s_endpgm")

    S.reset()
    S.lab("L_producer")
    nstamp[0] = 0
    e("s_sub_u32 s21, s18, 4")
    if opt.pprio: e(f"s_setprio {opt.pprio}")
    e("v_lshrrev_b32 v9, 5, v7")
    e("v_and_b32 v11, 31, v7")
    e("s_lshl_b32 s22, s21, 1")
    e("v_add_u32 v9, s22, v9")
    e("v_mul_u32_u24 v2, 114688, v9")
    e("v_lshl_add_u32 v2, v11, 4, v2")
    for j in range(1, 8):
        e(f"s_mov_b32 s{43+j}, {j*14336}")
    e("s_mov_b32 s30, 903680")
    e("s_mov_b32 s31, 0x20000")
    e("s_lshl_b32 s22, s20, 9")
    e("s_waitcnt lgkmcnt(0)")
    e("s_mov_b32 s14, 0")
    e("s_mov_b32 s15, 0")
    e("s_add_u32 s8, s6, s22")
    e("s_addc_u32 s9, s7, 0")
    e("s_and_b32 s9, s9, 0xffff")
    def set_k(which):
        cnt = "s14" if which == "q" else "s15"
        e(f"s_add_u32 s12, s93, {cnt}")
        e(f"s_and_b32 s12, s12, {RM}")
        if RM != 15:
            e(f"s_and_b32 s13, {cnt}, {15 - RM}")
            e("s_or_b32 s12, s12, s13")
        if opt.noadv: e("s_mov_b32 s12, 0")
        if which == "q":
            e("s_mul_i32 s12, s12, 917504")
            e("s_add_u32 s28, s8, s12")
            e("s_addc_u32 s29, s9, 0")
        else:
            e("s_lshl_b32 s12, s12, 7")
            e("s_add_u32 s24, s10, s12")
            e("s_addc_u32 s25, s11, 0")
        e(f"s_add_u32 {cnt}, {cnt}, 1")
    def qb(b): return 256 - 32 * NQ + 32 * b
    def issue_x(u, j):
        if j == 0:
            e("s_add_u32 m0, s23, s33")
            set_k("x")
        if j == 4:
            e("s_add_u32 m0, m0, 0x1000")
            e(f"s_add_u32 s33, s33, 0x8000")
            e(f"s_cmp_eq_u32 s33, {NX*32768}")
            e("s_cselect_b32 s33, 0, s33")
        so = "0" if j == 0 else f"s{50+j}"
        if not opt.nox:
            off = (j & 3) * 1024
            e(f"buffer_load_dwordx4 v{80+(j&3)}, s[24:27], {so} offen offset:{off}{opt.xmod} lds")
            S.issue("vm", ("X", u))
    def issue_q(u, j):
        b = u % NQ
        if j == 0: set_k("q")
        r = qb(b) + 4 * j
        so = "0" if j == 0 else f"s{43+j}"
        if not opt.noq:
            e(f"buffer_load_dwordx4 v[{r}:{r+3}], v2, s[28:31], {so} offen{opt.qmod}")
            S.issue("vm", ("Q", u))
    for j in range(8): issue_q(0, j)
    if opt.stamp:
        e("s_mov_b32 s62, s60")
        nstamp[0] = 1
    e("v_and_b32 v12, 3, v11")
    e("v_bfe_u32 v13, v11, 2, 1")
    e("v_lshrrev_b32 v14, 3, v11")
    e("v_lshlrev_b32 v14, 5, v14")
    e("v_lshl_add_u32 v14, v12, 3, v14")
    e("v_lshl_add_u32 v14, v13, 2, v14")
    e("v_lshl_or_b32 v12, v13, 2, v12")
    e("v_xor_b32 v12, v12, v9")
    e("v_lshlrev_b32 v12, 4, v12")
    e("v_lshl_add_u32 v5, v14, 7, v12")
    e(f"v_add_u32 v5, {WRING}, v5")
    e("v_xor_b32 v6, 64, v5")
    e("v_lshlrev_b32 v3, 4, v11")
    e(f"v_add_u32 v3, {STAB}, v3")
    e("v_lshlrev_b32 v4, 5, v9")
    e(f"v_add_u32 v4, {ATAB}, v4")
    e("s_mov_b32 s92, 0")
    nx0 = 0
    nq0 = 1
    for g in opt.pre.split(","):
        if g == "q":
            for j in range(8): issue_q(nq0, j)
            nq0 += 1
    stamp()
    e("s_barrier")
    for g in opt.pro.split(","):
        if g == "q":
            for j in range(8): issue_q(nq0, j)
            nq0 += 1
    TB = [16, 32]
    def tab_read(u):
        r = TB[u & 1]
        e(f"ds_read_b128 v[{r}:{r+3}], v3");                S.issue("lgkm", ("T", u))
        e(f"ds_read_b128 v[{r+4}:{r+7}], v3 offset:8192");  S.issue("lgkm", ("T", u))
        e(f"ds_read_b128 v[{r+8}:{r+11}], v4");             S.issue("lgkm", ("T", u))
        e(f"ds_read_b128 v[{r+12}:{r+15}], v4 offset:16");  S.issue("lgkm", ("T", u))
        e("v_add_u32 v3, 512, v3")
        e("v_add_u32 v4, 256, v4")
    TT = [48, 56]
    DD = [64, 68, 72, 76]
    tab_read(0)
    S.c("ALIGN_ON") if opt.align else None
    ramp = [int(v) for v in opt.ramp.split(",")]
    NH = len(ramp)
    depth = nq0 + sum(ramp) - NH
    NLOOP = NT - depth
    assert (NLOOP - NH) % 4 == 0 and depth <= NQ - 1, (NLOOP, NH, depth)
    nextq = nq0
    for t in range(-1, NT - 1):
        u = t + 1
        b = u % NQ
        tail = u >= NLOOP
        head = u < NH
        S.emit = head or (u < NH + 4) or tail
        if u == NH:
            S.d(".p2align 6")
            S.lab("L_ploop")
        site = ("tail", u) if tail else (("head", u) if head else b)
        S.c(f"producer iteration u%4={b}" + (" (tail)" if tail else " (head)" if head else ""))
        ng = ramp[u] if head else (0 if tail else 1)
        qlist = list(range(nextq, nextq + ng)); nextq += ng
        tb = TB[u & 1]
        vm = [("q", qq, j) for qq in qlist for j in range(8)]
        def do_vm(n):
            for _ in range(n):
                if vm:
                    k, uu, j = vm.pop(0)
                    (issue_x if k == "x" else issue_q)(uu, j)
        if opt.stamp >= 2: e("s_memtime s[60:61]")
        do_vm(opt.burst)
        if u + 1 < NT: tab_read(u + 1)
        S.wait("lgkm", ("T", site), {("T", u)})
        S.wait("vm", ("Q", site), {("Q", u)})
        par = (u & 1) * 16384
        total = len(vm)
        slot = [0]; issued = [0]
        nsl = opt.nsl
        def slot_vm():
            slot[0] += 1
            k = slot[0] - opt.qs0
            target = 0 if k <= 0 else min(total, (total * k + nsl - 1) // nsl)
            n = target - issued[0]
            if n > 0:
                do_vm(n); issued[0] += n
        def wr(c):
            if opt.nodq or opt.nowr: return
            a = "v5" if c < 2 else "v6"
            e(f"ds_write_b128 {a}, v[{DD[c]}:{DD[c]+3}] offset:{par + c*128}")
            S.issue("lgkm", ("W", u))
        for c in range(4):
            T = TT[c & 1]
            if not opt.nodq:
                for j in range(8):
                    q = qb(b) + 4 * j + c
                    e(f"v_fma_mix_f32 v{T+j}, v{q}, v{tb+c}, v{tb+4+c} op_sel_hi:[1,0,0]")
                    if j == 3: slot_vm()
            else:
                slot_vm()
            slot_vm()
            if opt.wrpos == 1:
                if c == 2: wr(0)
                if c == 3: wr(2)
            if not opt.nodq:
                for j in range(8):
                    e(f"v_mul_f32_e64 v{T+j}, v{T+j}, v{tb+8+j}")
            slot_vm()
            if opt.wrpos == 1 and c == 2: wr(1)
            if not opt.nodq:
                for i in range(4):
                    e(f"v_cvt_pk_bf16_f32 v{DD[c]+i}, v{T+2*i}, v{T+2*i+1}")
            if opt.wrpos == 0: wr(c)
            if opt.wrpos == 1 and c == 3: wr(3)
            if opt.wrpos == 2 and c == 3:
                for cc in range(4): wr(cc)
            slot_vm()
        do_vm(99)
        S.wait("lgkm", ("W", site), {("W", u)})
        if opt.stamp >= 2:
            e("s_waitcnt lgkmcnt(0)")
            e("s_mov_b32 m0, s92"); e("s_nop 0"); e("v_writelane_b32 v100, s60, m0")
            e("s_add_u32 s92, s92, 1")
        e("s_barrier")
        if not tail and not head and (u - NH) % 4 == 3:
            e(f"s_cmp_lt_u32 s14, {NT}")
            e("s_cbranch_scc1 L_ploop")
    S.emit = True
    S.c("ALIGN_OFF")
    if opt.stamp:
        if opt.stamp >= 2:
            e("s_memtime s[60:61]")
            e("s_waitcnt lgkmcnt(0)")
            e("s_mov_b32 m0, s92"); e("s_nop 0"); e("v_writelane_b32 v100, s60, m0")
            e("s_lshl_b32 s56, s2, 11")
            e("s_lshl_b32 s57, s18, 8")
            e("s_add_u32 s56, s56, s57")
            e("s_add_u32 s56, s56, 128")
            e("s_add_u32 s56, s58, s56")
            e("s_addc_u32 s57, s59, 0")
            e("v_lshlrev_b32 v101, 2, v7")
            e("v_cmp_gt_u32 vcc, 32, v7")
            e("s_and_saveexec_b64 s[44:45], vcc")
            e("global_store_dword v101, v100, s[56:57]")
            e("s_mov_b64 exec, s[44:45]")
        stamp()
        stamp_store(e, 8, 62)
    S.lab("L_end")
    e("s_endpgm")
    if NPF:
        S.lab("L_prefetch")
        if opt.pf == 2:
            e("s_load_dwordx2 s[4:5], s[0:1], 0")
            e("v_lshrrev_b32 v1, 6, v0")
            e("v_and_b32 v7, 63, v0")
            e("s_and_b32 s16, s2, 7")
            e("v_readfirstlane_b32 s18, v1")
            e(f"s_sub_u32 s17, s2, {0 if opt.pffirst else NWG}")
            e("s_lshr_b32 s17, s17, 3")
            e("s_and_b32 s19, s16, 1")
            e("s_lshl_b32 s19, s19, 2")
            e("s_add_u32 s19, s19, s17")
            e(f"s_mul_i32 s93, s17, {opt.rm}")
            if opt.rx:
                e("s_and_b32 s21, s16, 1")
                e(f"s_mul_i32 s21, s21, {opt.rx}")
                e("s_add_u32 s93, s93, s21")
            e(f"s_and_b32 s93, s93, {RM}")
            e("s_and_b32 s20, s18, 3")
            e("s_lshr_b32 s21, s18, 2")
            e("s_lshl_b32 s20, s20, 6")
            e("v_add_u32 v2, s20, v7")
            e("v_lshlrev_b32 v2, 11, v2")
            e("s_lshl_b32 s22, s19, 19")
            e("s_mov_b32 s26, 522368")
            e("s_mov_b32 s27, 0x20000")
            e(f"s_add_u32 s6, s21, {opt.pf0}")
            e("s_waitcnt lgkmcnt(0)")
            e("s_add_u32 s4, s4, s22")
            e("s_addc_u32 s5, s5, 0")
            e("s_and_b32 s5, s5, 0xffff")
            S.lab("L_pfx")
            e("s_add_u32 s12, s93, s6")
            e(f"s_and_b32 s12, s12, {RM}")
            e(f"s_and_b32 s13, s6, {15 - RM}")
            e("s_or_b32 s12, s12, s13")
            e("s_lshl_b32 s12, s12, 7")
            e("s_add_u32 s24, s4, s12")
            e("s_addc_u32 s25, s5, 0")
            e("buffer_load_dword v8, v2, s[24:27], 0 offen")
            e("s_add_u32 s6, s6, 2")
            e(f"s_cmp_lt_u32 s6, {NT}")
            e("s_cbranch_scc1 L_pfx")
            e("s_endpgm")
        if opt.pf == 1:
            e("s_load_dwordx2 s[6:7], s[0:1], 8")
            e("v_lshrrev_b32 v1, 6, v0")
            e("v_and_b32 v7, 63, v0")
            e("s_and_b32 s16, s2, 7")
            e("v_readfirstlane_b32 s18, v1")
            e(f"s_sub_u32 s17, s2, {0 if opt.pffirst else NWG}")
            e("s_lshr_b32 s17, s17, 3")
            e("s_cmp_ge_u32 s18, 7")
            e("s_cbranch_scc1 L_end")
            e("s_lshr_b32 s20, s16, 1")
            e("s_mul_i32 s20, s20, 7")
            e("s_add_u32 s20, s20, s18")
            e(f"s_mul_i32 s21, s17, {opt.rm}")
            e(f"s_mul_i32 s22, s18, {opt.rn}")
            e("s_add_u32 s21, s21, s22")
            e("s_add_u32 s21, s21, 1")
            e(f"s_and_b32 s21, s21, {RM}")
            e("v_mul_u32_u24 v2, 14336, v7")
            e("s_lshl_b32 s22, s20, 9")
            e("s_mov_b32 s30, 903680")
            e("s_mov_b32 s31, 0x20000")
            e("s_waitcnt lgkmcnt(0)")
            e("s_add_u32 s8, s6, s22")
            e("s_addc_u32 s9, s7, 0")
            e("s_and_b32 s9, s9, 0xffff")
            phases = []
            if opt.pfa: phases.append(("A", 0))
            phases.append(("B", 8))
            for name, add in phases:
                if name == "A":
                    e(f"s_cmp_ge_u32 s18, {opt.pfa}")
                    e("s_cbranch_scc1 L_pfB")
                else:
                    S.lab("L_pfB")
                e(f"s_add_u32 s12, s21, {add}")
                e("s_mul_i32 s12, s12, 917504")
                e("s_add_u32 s28, s8, s12")
                e("s_addc_u32 s29, s9, 0")
                for i in range(4):
                    e(f"buffer_load_dword v{8+i}, v2, s[28:31], 0 offen offset:{i*128}")
            e("s_endpgm")


    hdr = HEADER + f"; @launch grid=({NWG + NPF},1,1) block=(512,1,1) lds={LDS}\n"
    pre = f""".amdgcn_target "amdgcn-amd-amdhsa--gfx950"
.text
.globl {KNAME}
.p2align 8
.type {KNAME},@function
{KNAME}:
"""
    post = f""".section .rodata,"a"
.p2align 6
.amdhsa_kernel {KNAME}
  .amdhsa_next_free_vgpr 256
  .amdhsa_next_free_sgpr 96
  .amdhsa_accum_offset 256
  .amdhsa_group_segment_fixed_size 0
  .amdhsa_kernarg_size 64
  .amdhsa_user_sgpr_count 2
  .amdhsa_user_sgpr_kernarg_segment_ptr 1
  .amdhsa_system_sgpr_workgroup_id_x 1
.end_amdhsa_kernel
"""
    return hdr + pre + "\n".join(S.resolve()) + "\n" + post

def parse(argv=None):
    ap = argparse.ArgumentParser()
    ap.add_argument("-o", default="k.s")
    ap.add_argument("--stamp", type=int, default=0)
    for f in ("nomfma", "nodq", "nox", "noq", "noc", "noadv", "nowr", "fake16"):
        ap.add_argument("--" + f, action="store_true")
    ap.add_argument("--xpos", default="6,7")
    ap.add_argument("--nsl", type=int, default=16)
    ap.add_argument("--qs0", type=int, default=0)
    ap.add_argument("--xph", default="0,1,2,3")
    ap.add_argument("--pf", type=int, default=0)
    ap.add_argument("--pfa", type=int, default=4)
    ap.add_argument("--epo", type=int, default=0)
    ap.add_argument("--pre", default="")
    ap.add_argument("--pf0", type=int, default=1)
    ap.add_argument("--pffirst", type=int, default=0)
    ap.add_argument("--rx", type=int, default=0)
    ap.add_argument("--ramp", default="1,2")
    ap.add_argument("--pro", default="")
    ap.add_argument("--align", type=int, default=1)
    ap.add_argument("--cprio", type=int, default=3)
    ap.add_argument("--pprio", type=int, default=0)
    ap.add_argument("--rotn", type=int, default=8)
    ap.add_argument("--rm", type=int, default=2)
    ap.add_argument("--rn", type=int, default=1)
    ap.add_argument("--wrpos", type=int, default=0)
    ap.add_argument("--burst", type=int, default=0)
    ap.add_argument("--rpm", type=int, default=1)
    ap.add_argument("--stmod", default="nt")
    ap.add_argument("--qmod", default="")
    ap.add_argument("--xmod", default="")
    opt = ap.parse_args(argv)
    for k in ("stmod", "qmod", "xmod"):
        v = getattr(opt, k)
        if v: setattr(opt, k, " " + v)
    return opt

if __name__ == "__main__":
    opt = parse()
    open(opt.o, "w").write(gen(opt))
```

```python
import sys, argparse, re

KNAME = "standalone__weight_only_int_omniquant__prompt_kernel"
HEADER = """; Kernarg layout for this problem (64 bytes, ptrs only, base s[0:1]):
;
;   waves 0-3: MFMA consumers (128x64 each, v_mfma_f32_32x32x16_bf16, D = W'^T x^T)
"""
NT = 16

def isize(line):
    s = line.strip()
    if not s or s.startswith(";") or s.endswith(":") or s.startswith("."): return 0
    s = s.split(";")[0].strip()
    op = s.split()[0]
    args = s[len(op):]
    def has_lit():
        for tok in re.split(r"[,\s]+", args):
            tok = tok.strip()
            if not tok: continue
            if re.fullmatch(r"-?(0x[0-9a-fA-F]+|\d+)", tok):
                v = int(tok, 0)
                if v < -16 or v > 64: return True
            elif re.fullmatch(r"L_\w+-\w+", tok): return True
        return False
    if op.startswith(("ds_", "buffer_", "global_", "flat_", "s_load", "s_memtime", "s_memrealtime", "v_mfma", "v_pk_", "v_fma_mix")): return 8
    if op in ("s_waitcnt", "s_barrier", "s_nop", "s_endpgm", "s_setprio", "s_branch", "s_sleep") or op.startswith("s_cbranch"): return 4
    if op.startswith("s_"):
        if op in ("s_movk_i32", "s_addk_i32", "s_mulk_i32"): return 4
        return 8 if has_lit() else 4
    if op.startswith("v_"):
        vop3 = ("v_fma_f32", "v_cvt_pk_bf16_f32", "v_lshl_add_u32", "v_lshl_or_b32", "v_mul_lo_u32", "v_bfe_u32", "v_add3_u32", "v_perm_b32", "v_and_or_b32", "v_readlane_b32", "v_writelane_b32", "v_cmp_gt_u32")
        if op in vop3 or op.endswith("_e64"): return 8
        return 8 if has_lit() else 4
    raise ValueError(line)

class Stream:
    def __init__(self):
        self.L = []
        self.sites = {}
        self.emit = True
        self.maxn = {"vm": 63, "lgkm": 15}
        self.reset()
    def reset(self):
        self.q = {"vm": [], "lgkm": []}
    def e(self, s):
        if self.emit: self.L.append("    " + s)
    def lab(self, s):
        if self.emit: self.L.append(s + ":")
    def c(self, s):
        if self.emit: self.L.append("    ; " + s)
    def d(self, s):
        if self.emit: self.L.append(s)
    def issue(self, ctr, tag): self.q[ctr].append(tag)
    def wait(self, ctr, site, tags):
        q = self.q[ctr]
        last = -1
        for i, t in enumerate(q):
            if t in tags: last = i
        n = self.maxn[ctr] if last < 0 else min(len(q) - 1 - last, self.maxn[ctr])
        key = (ctr, site)
        self.sites[key] = min(self.sites.get(key, 99), n)
        if self.emit: self.L.append(("wait", key))
    def waitall(self, ctr):
        self.q[ctr] = []
        self.e(f"s_waitcnt {'vmcnt' if ctr=='vm' else 'lgkmcnt'}(0)")
    def resolve(self, align_regions=True):
        out = []
        for s in self.L:
            if isinstance(s, tuple):
                ctr, site = s[1]
                n = self.sites[s[1]]
                if n >= self.maxn[ctr]: continue
                out.append(f"    s_waitcnt {'vmcnt' if ctr=='vm' else 'lgkmcnt'}({n})")
            else:
                out.append(s)
        res = []
        off = 0
        on = False
        for s in out:
            t = s.strip()
            if t == "; ALIGN_ON": on = True
            if t == "; ALIGN_OFF": on = False
            if t.startswith(".p2align"):
                a = 1 << int(t.split()[1].rstrip(","))
                off = (off + a - 1) // a * a
                res.append(s); continue
            sz = isize(s)
            if on and sz == 8 and off % 8 == 4:
                res.append("    s_nop 0"); off += 4
            res.append(s); off += sz
        return res

def stamp_store(e, nst, first):
    e("s_waitcnt lgkmcnt(0)")
    e("s_lshl_b32 s56, s2, 11")
    e("s_lshl_b32 s57, s18, 8")
    e("s_add_u32 s56, s56, s57")
    e("s_add_u32 s58, s58, s56")
    e("s_addc_u32 s59, s59, 0")
    e("s_mov_b64 exec, 1")
    e("v_mov_b32 v24, 0")
    for i in range(nst):
        e(f"v_mov_b32 v16, s{first+i}")
        e(f"global_store_dword v24, v16, s[58:59] offset:{4*i}")

def gen(opt):
    NWG = 224
    NX = 3
    NQ = 4
    XRING = 0
    WRING = NX * 32768
    STAB = WRING + 32768
    ZTAB = STAB + 8192
    ATAB = ZTAB + 8192
    LDS = ATAB + 4096 + 512
    EPI = 32768
    S = Stream()
    e = S.e
    nstamp = [0]
    def stamp():
        if not opt.stamp: return
        e("s_memrealtime s[60:61]")
        e("s_waitcnt lgkmcnt(0)")
        e(f"s_mov_b32 s{62+nstamp[0]}, s60")
        nstamp[0] += 1
    RM = opt.rotn - 1
    NPF = 32 if opt.pf else 0
    e(f"s_cmp_ge_u32 s2, {NWG + NPF}")
    e("s_cbranch_scc1 L_end")
    if NPF and opt.pffirst:
        e(f"s_cmp_lt_u32 s2, {NPF}")
        e("s_cbranch_scc1 L_prefetch")
        e(f"s_sub_u32 s2, s2, {NPF}")
    elif NPF:
        e(f"s_cmp_ge_u32 s2, {NWG}")
        e("s_cbranch_scc1 L_prefetch")
    if opt.stamp:
        e("s_memrealtime s[60:61]")
    e("s_load_dwordx8 s[4:11], s[0:1], 0")
    e("s_load_dwordx4 s[12:15], s[0:1], 32")
    if opt.cpf:
        e("s_getpc_b64 s[44:45]")
        S.lab("L_pc")
        e("s_sub_u32 s44, s44, L_pc-" + KNAME)
        e("s_subb_u32 s45, s45, 0")
        e("v_lshlrev_b32 v30, 7, v0")
        e("v_min_u32 v30, L_codeend-" + KNAME + ", v30")
        e("global_load_dword v126, v30, s[44:45]")
    if opt.stamp:
        e("s_load_dwordx2 s[58:59], s[0:1], 56")
    e("v_lshrrev_b32 v1, 6, v0")
    e("s_and_b32 s16, s2, 7")
    e("s_lshr_b32 s17, s2, 3")
    e("v_readfirstlane_b32 s18, v1")
    e("s_and_b32 s19, s16, 1")
    e("s_lshl_b32 s19, s19, 2")
    e("s_and_b32 s20, s17, 3")
    e("s_lshr_b32 s21, s17, 2")
    e(f"s_mul_i32 s93, s20, {opt.rm}")
    e("s_add_u32 s19, s19, s20")
    e("s_lshr_b32 s20, s16, 1")
    e("s_mul_i32 s20, s20, 7")
    e("s_add_u32 s20, s20, s21")
    e(f"s_mul_i32 s21, s21, {opt.rn}")
    e("s_add_u32 s93, s93, s21")
    if opt.rx:
        e("s_and_b32 s21, s16, 1")
        e(f"s_mul_i32 s21, s21, {opt.rx}")
        e("s_add_u32 s93, s93, s21")
    e(f"s_and_b32 s93, s93, {RM}")
    e("v_and_b32 v7, 63, v0")
    e("s_cmp_ge_u32 s18, 4")
    e("s_cbranch_scc1 L_producer")

    S.c("consumer waves")
    e(f"s_setprio {opt.cprio}")
    e("v_lshrrev_b32 v12, 4, v0")
    e("v_and_b32 v13, 15, v0")
    e("v_mul_u32_u24 v14, 7168, v12")
    e("v_lshl_add_u32 v14, v13, 4, v14")
    e("v_lshlrev_b32 v15, 3, v0")
    e("s_lshl_b32 s23, s20, 8")
    e("s_sub_u32 s34, 114688, s23")
    e("s_mov_b32 s35, 0x20000")
    e("s_mov_b32 s38, s34")
    e("s_mov_b32 s39, 0x20000")
    e("s_mov_b32 s42, 2048")
    e("s_mov_b32 s43, 0x20000")
    e("s_waitcnt lgkmcnt(0)")
    e("s_add_u32 s32, s8, s23")
    e("s_addc_u32 s33, s9, 0")
    e("s_and_b32 s33, s33, 0xffff")
    e("s_add_u32 s36, s10, s23")
    e("s_addc_u32 s37, s11, 0")
    e("s_and_b32 s37, s37, 0xffff")
    e("s_mov_b32 s40, s12")
    e("s_and_b32 s41, s13, 0xffff")
    e("buffer_load_dwordx4 v[16:19], v14, s[32:35], 0 offen")
    e("buffer_load_dwordx4 v[20:23], v14, s[36:39], 0 offen")
    e("buffer_load_dwordx2 v[24:25], v15, s[40:43], 0 offen")
    e("v_lshrrev_b32 v8, 3, v7")
    e("s_lshl_b32 s23, s18, 6")
    e("v_add_u32 v8, s23, v8")
    e("v_lshrrev_b32 v9, 5, v7")
    e("v_lshrrev_b32 v10, 4, v7")
    e("v_xor_b32 v10, v9, v10")
    e("v_and_b32 v10, 1, v10")
    e("v_lshlrev_b32 v10, 2, v10")
    e("v_and_b32 v11, 7, v7")
    e("v_xor_b32 v10, v10, v11")
    e("v_lshlrev_b32 v10, 4, v10")
    e("v_lshl_add_u32 v112, v8, 11, v10")
    for jj in range(1, 4):
        e(f"v_xor_b32 v{112+jj}, {jj<<4}, v112")
    for j in range(1, 8):
        e(f"s_mov_b32 s{47+j}, {j*16384 - (j&3)*1024}")
    e("s_lshl_b32 s55, s18, 13")
    e("s_lshl_b32 s23, s19, 19")
    e("s_add_u32 s4, s4, s23")
    e("s_addc_u32 s5, s5, 0")
    e("s_and_b32 s5, s5, 0xffff")
    e("s_mov_b32 s10, 522368")
    e("s_mov_b32 s11, 0x20000")
    e("s_mov_b32 s6, 0")
    e("s_mov_b32 s7, 0")
    def cx_set():
        e("s_add_u32 m0, s55, s7")
        e("s_add_u32 s12, s93, s6")
        e(f"s_and_b32 s12, s12, {RM}")
        if RM != 15:
            e(f"s_and_b32 s13, s6, {15 - RM}")
            e("s_or_b32 s12, s12, s13")
        if opt.noadv: e("s_mov_b32 s12, 0")
        e("s_lshl_b32 s12, s12, 7")
        e("s_add_u32 s8, s4, s12")
        e("s_addc_u32 s9, s5, 0")
        e("s_add_u32 s6, s6, 1")
    def cx_issue(u, j):
        if j == 0: cx_set()
        if j == 4:
            e("s_add_u32 m0, m0, 0x1000")
            e("s_add_u32 s7, s7, 0x8000")
            e(f"s_cmp_eq_u32 s7, {NX*32768}")
            e("s_cselect_b32 s7, 0, s7")
        so = "0" if j == 0 else f"s{47+j}"
        if not opt.nox:
            e(f"buffer_load_dwordx4 v{112+(j&3)}, s[8:11], {so} offen offset:{(j&3)*1024}{opt.xmod} lds")
            S.issue("vm", ("X", u))
    for j in range(8): cx_issue(0, j)
    if opt.stamp:
        e("s_mov_b32 s62, s60")
        nstamp[0] = 1
    e("s_and_b32 s21, s18, 1")
    e("s_lshr_b32 s22, s18, 1")
    e("v_and_b32 v10, 31, v7")
    e("v_lshrrev_b32 v11, 5, v7")
    e("v_lshrrev_b32 v2, 3, v10")
    e("v_lshrrev_b32 v3, 2, v10")
    e("v_lshrrev_b32 v4, 1, v10")
    e("v_xor_b32 v3, v3, v4")
    e("v_and_b32 v3, 1, v3")
    e("v_lshl_or_b32 v2, v3, 2, v2")
    e("v_xor_b32 v2, v2, v11")
    e("v_lshlrev_b32 v2, 4, v2")
    e("v_lshl_add_u32 v9, v10, 7, v2")
    e("s_lshl_b32 s23, s21, 14")
    e("s_lshl_b32 s24, s22, 13")
    e(f"s_add_u32 s24, s24, {WRING}")
    XA = [2, 3, 4, 5]
    WA = [64, 65, 66, 67]
    for ks in range(4):
        e(f"v_xor_b32 v8, {ks*32}, v9")
        e(f"v_add_u32 v{XA[ks]}, s23, v8")
        e(f"v_add_u32 v{WA[ks]}, s24, v8")
    for r in range(128, 256):
        e(f"v_mov_b32 v{r}, 0")
    e("s_mov_b32 s31, 0xffff0000")
    e("s_mov_b32 s30, 0x4b800000")
    e("v_subrev_u32 v74, s93, v12")
    e(f"v_and_b32 v74, {RM}, v74")
    if RM != 15:
        e(f"v_and_b32 v75, {15 - RM}, v12")
        e("v_or_b32 v74, v74, v75")
    e("v_lshlrev_b32 v72, 9, v74")
    e("v_lshl_add_u32 v72, v13, 5, v72")
    e(f"v_add_u32 v72, {STAB}, v72")
    e("v_lshlrev_b32 v73, 8, v74")
    e("v_lshl_add_u32 v73, v13, 4, v73")
    e(f"v_add_u32 v73, {ATAB}, v73")
    e("s_waitcnt vmcnt(%d)" % (0 if opt.nox else 8))
    for d in range(4):
        e(f"v_lshlrev_b32 v{80+2*d}, 16, v{16+d}")
        e(f"v_and_b32 v{81+2*d}, s31, v{16+d}")
        e(f"v_lshlrev_b32 v{88+2*d}, 16, v{20+d}")
        e(f"v_and_b32 v{89+2*d}, s31, v{20+d}")
    for d in range(8):
        e(f"v_mul_f32_e64 v{88+d}, -v{88+d}, v{80+d}")
    for d in range(8):
        e(f"v_mul_f32 v{80+d}, s30, v{80+d}")
    for d in range(2):
        e(f"v_lshlrev_b32 v{96+2*d}, 16, v{24+d}")
        e(f"v_and_b32 v{97+2*d}, s31, v{24+d}")
    e("ds_write_b128 v72, v[80:83]")
    e("ds_write_b128 v72, v[84:87] offset:16")
    e("ds_write_b128 v72, v[88:91] offset:8192")
    e("ds_write_b128 v72, v[92:95] offset:8208")
    e("ds_write_b128 v73, v[96:99]")
    e("s_lshl_b32 s25, s19, 8")
    e("s_lshl_b32 s26, s21, 7")
    e("s_add_u32 s25, s25, s26")
    e("s_mul_i32 s25, s25, 7168")
    e("s_lshl_b32 s26, s20, 8")
    e("s_lshl_b32 s27, s22, 7")
    e("s_add_u32 s26, s26, s27")
    e("s_add_u32 s25, s25, s26")
    e("s_add_u32 s40, s14, s25")
    e("s_addc_u32 s41, s15, 0")
    e("s_and_b32 s41, s41, 0xffff")
    e("s_sub_u32 s42, 14680064, s25")
    e("s_mov_b32 s43, 0x20000")
    e("v_and_b32 v12, 7, v10")
    e("v_lshlrev_b32 v13, 1, v11")
    e("v_xor_b32 v12, v12, v13")
    e("v_lshlrev_b32 v12, 4, v12")
    e("v_lshl_add_u32 v12, v10, 7, v12")
    e("s_lshl_b32 s26, s18, 14")
    e(f"s_add_u32 s26, s26, {EPI}")
    e("v_add_u32 v12, s26, v12")
    EW = [72, 73, 74, 75]
    e("s_waitcnt lgkmcnt(0)")
    for tn in range(2):
        for q in range(2):
            e(f"v_xor_b32 v{EW[tn*2+q]}, {(4*tn+q)<<4}, v12")
    e("v_lshrrev_b32 v13, 3, v7")
    e("v_and_b32 v14, 7, v7")
    e("v_xor_b32 v15, v14, v13")
    e("v_lshlrev_b32 v15, 4, v15")
    e("v_lshl_add_u32 v15, v13, 7, v15")
    e("v_add_u32 v76, s26, v15")
    e("v_mul_u32_u24 v77, 7168, v13")
    e("v_lshl_add_u32 v77, v14, 4, v77")
    e("s_mov_b32 s28, 0")
    e("s_mov_b32 s29, 0")
    e("s_mov_b32 s44, 0x8000")
    e("s_mov_b32 s45, 0xffff0000")
    e("s_barrier")
    stamp()
    for j in range(8): cx_issue(1, j)
    F = [dict(x=[16, 20, 24, 28], w=[32, 36]), dict(x=[40, 44, 48, 52], w=[56, 60])]
    def acc(tn, tm):
        b = 128 + (tn * 4 + tm) * 16
        return f"v[{b}:{b+15}]"
    def rd(buf, kind, idx, t, ks):
        if opt.noc: return
        if kind == "x":
            r = F[buf]["x"][idx]
            e(f"ds_read_b128 v[{r}:{r+3}], v{XA[ks]} offset:{idx*4096}")
        else:
            r = F[buf]["w"][idx]; off = idx * 4096 + (t & 1) * 16384
            e(f"ds_read_b128 v[{r}:{r+3}], v{WA[ks]} offset:{off}")
        S.issue("lgkm", (t, ks, kind, idx))
    order = [("w", 0), ("x", 0), ("x", 1), ("x", 2), ("x", 3), ("w", 1)]
    def phase(mf, rdspec, site, tm_major=False, after=None, xd=None):
        if tm_major: mfs = [(tn, tm) for tm in range(4) for tn in range(2)]
        else: mfs = [(tn, tm) for tn in range(2) for tm in range(4)]
        reads = list(order) if rdspec else []
        ri = 0
        for mi, (tn, tm) in enumerate(mfs):
            for _ in range(opt.rpm):
                if ri < len(reads):
                    kind, idx = reads[ri]; ri += 1
                    rd(rdspec[2], kind, idx, rdspec[0], rdspec[1])
            t, ks, buf = mf
            if mi <= 4: S.wait("lgkm", (site, mi), {(t, ks, "w", tn), (t, ks, "x", tm)})
            if not opt.nomfma:
                xr = F[buf]["x"][tm]; wr = F[buf]["w"][tn]
                if opt.fake16:
                    b0 = 128 + (tn * 4 + tm) * 16 + (ks & 1) * 8
                    xr2 = F[buf]["x"][(tm + 1) % 4]
                    e(f"v_mfma_f32_16x16x32_bf16 v[{b0}:{b0+3}], v[{wr}:{wr+3}], v[{xr}:{xr+3}], v[{b0}:{b0+3}]")
                    e(f"v_mfma_f32_16x16x32_bf16 v[{b0+4}:{b0+7}], v[{wr}:{wr+3}], v[{xr2}:{xr2+3}], v[{b0+4}:{b0+7}]")
                else:
                    e(f"v_mfma_f32_32x32x16_bf16 {acc(tn,tm)}, v[{wr}:{wr+3}], v[{xr}:{xr+3}], {acc(tn,tm)}")
            if after and mi == 6: after()
            if xd and mi in xd[1]:
                if xd[2]: cx_issue(xd[0], xd[2].pop(0))
    def advance_stage():
        e("s_cmp_eq_u32 s29, 2")
        e("s_cselect_b32 s46, s45, s44")
        e("s_cselect_b32 s47, -1, s29")
        e("s_add_u32 s29, s47, 1")
        for ks in range(4):
            e(f"v_add_u32 v{XA[ks]}, s46, v{XA[ks]}")
    e("s_waitcnt vmcnt(%d)" % (0 if opt.nox else 8))
    e("s_barrier")
    if opt.stamp:
        e("s_memtime s[88:89]")
        stamp()
        e("s_mov_b32 s86, s88")
    for kind, idx in order: rd(0, kind, idx, 0, 0)
    _q = list(S.q["vm"])
    n0 = len(opt.xpos.split(",")) if "0" in opt.xph.split(",") else 0
    for jj in range(n0): cx_issue(2, jj)
    S.q["vm"] = _q
    e("s_branch L_cB0")
    S.d(".p2align 6")
    S.lab("L_cloop")
    S.emit = True
    saveL = S.L
    body = {}
    xpos = [int(v) for v in opt.xpos.split(",")]
    for t in range(NT):
        par = t & 1
        tail = t >= NT - 2
        site0 = ("tail", par) if tail else par
        S.L = []
        S.emit = True
        js = list(range(8))
        xd = None if tail else (t + 2, xpos, js)
        xph = [int(v) for v in opt.xph.split(",")]
        def xdp(p): return xd if p in xph else None
        if opt.epo and t == NT - 1:
            body[t] = []
            continue
        if t > 0:
            S.wait("vm", ("X", site0), {("X", t)})
            S.waitall("lgkm")
            e("s_barrier")
            phase((t-1, 3, 1), (t, 0, 0), (site0, 0), xd=xdp(0))
        else:
            saveL_extra = []
        if par == 0 and not tail: S.lab("L_cB0")
        if t == 0:
            for _ in range(n0):
                js.pop(0); S.issue("vm", ("X", 2))
        phase((t, 0, 0), (t, 1, 1), (site0, 1), xd=xdp(1))
        phase((t, 1, 1), (t, 2, 0), (site0, 2), xd=xdp(2))
        phase((t, 2, 0), (t, 3, 1), (site0, 3), after=advance_stage, xd=xdp(3))
        if par == 1 and not tail:
            e("s_add_u32 s28, s28, 1")
            e(f"s_cmp_lt_u32 s28, {NT//2 - 1}")
            e("s_cbranch_scc1 L_cloop")
        if t in (2, 3, NT - 2, NT - 1): body[t] = S.L
    S.L = saveL + body[2] + body[3] + body[NT - 2] + body[NT - 1]
    if not opt.epo:
        S.waitall("lgkm")
        phase((NT-1, 3, 1), None, ("fin", 0), tm_major=True)
        if opt.stamp:
            e("s_memtime s[88:89]")
            nstamp[0] = 20
            stamp()
            e("s_mov_b32 s87, s88")
        S.c("epilogue")
        S.reset()
        T = 80
        R = 16
        e("s_mov_b32 s27, 0")
        sidx = [0]
        def store(it):
            rr = R + (it % 8) * 4
            S.wait("lgkm", ("st", it), {("R", it)})
            e(f"buffer_store_dwordx4 v[{rr}:{rr+3}], v77, s[40:43], s27 offen{opt.stmod}")
            e(f"s_add_u32 s27, s27, 57344")
        if opt.stamp: e("s_nop 7")
        for tm in range(4):
            for tn in range(2):
                b = 128 + (tn * 4 + tm) * 16
                tb = T + ((tm * 2 + tn) % 4) * 8
                if tm == 3 and tn == 0 and not opt.stamp: e("s_nop 3")
                for d in range(8):
                    e(f"v_cvt_pk_bf16_f32 v{tb+d}, v{b+2*d}, v{b+2*d+1}")
                for q in range(2):
                    e(f"ds_write_b128 v{EW[tn*2+q]}, v[{tb+4*q}:{tb+4*q+3}] offset:{tm*4096}")
                    S.issue("lgkm", ("EWr", tm))
                if tm > 0:
                    store((tm - 1) * 4 + tn * 2); store((tm - 1) * 4 + tn * 2 + 1)
            for k in range(4):
                it = tm * 4 + k
                r = R + (it % 8) * 4
                e(f"ds_read_b128 v[{r}:{r+3}], v76 offset:{it*1024}")
                S.issue("lgkm", ("R", it))
        for it in range(12, 16): store(it)
    else:
        S.c("last K step: accumulators finish row block by row block; the epilogue overlaps the MFMAs")
        t = NT - 1
        e("s_waitcnt vmcnt(0)")
        S.waitall("lgkm")
        S.reset()
        e("s_barrier")
        W15 = {(ks, tn): 96 + (ks * 2 + tn) * 4 for ks in range(4) for tn in range(2)}
        XB = [[16 + 4 * ks for ks in range(4)], [40 + 4 * ks for ks in range(4)]]
        SR = [32, 36, 56, 60]
        TC = [80, 88]
        def rw(ks, tn):
            r = W15[(ks, tn)]
            e(f"ds_read_b128 v[{r}:{r+3}], v{WA[ks]} offset:{tn*4096 + (t & 1)*16384}")
            S.issue("lgkm", ("w", ks, tn))
        def rx(tm, ks):
            r = XB[tm & 1][ks]
            e(f"ds_read_b128 v[{r}:{r+3}], v{XA[ks]} offset:{tm*4096}")
            S.issue("lgkm", ("x", tm, ks))
        def cvt(tm, tn, d):
            b_ = 128 + (tn * 4 + tm) * 16
            e(f"v_cvt_pk_bf16_f32 v{TC[tn]+d}, v{b_+2*d}, v{b_+2*d+1}")
        def ewr(tm, tn, q):
            e(f"ds_write_b128 v{EW[tn*2+q]}, v[{TC[tn]+4*q}:{TC[tn]+4*q+3}] offset:{tm*4096}")
            S.issue("lgkm", ("EWr", tm))
        def erd(tm, k):
            it = tm * 4 + k
            e(f"ds_read_b128 v[{SR[k]}:{SR[k]+3}], v76 offset:{it*1024}")
            S.issue("lgkm", ("R", it))
        def est(tm, k):
            it = tm * 4 + k
            S.wait("lgkm", ("st", it), {("R", it)})
            e(f"buffer_store_dwordx4 v[{SR[k]}:{SR[k]+3}], v77, s[40:43], s27 offen{opt.stmod}")
            e(f"s_add_u32 s27, s27, 57344")
        def epi_list(tm):
            fl = []
            for tn in range(2):
                for d in range(8): fl.append(lambda tn=tn, d=d: cvt(tm, tn, d))
                for q in range(2): fl.append(lambda tn=tn, q=q: ewr(tm, tn, q))
            for k in range(4): fl.append(lambda k=k: erd(tm, k))
            return fl
        def run_block(mfmas, early, late):
            n = len(mfmas)
            for i, mf in enumerate(mfmas):
                mf()
                rem = n - i
                k = -(-len(early) // max(1, min(rem, 2))) if i < 2 else len(early)
                for _ in range(min(k, len(early))): early.pop(0)()
                if i >= 2:
                    k = -(-len(late) // rem)
                    for _ in range(min(k, len(late))): late.pop(0)()
            for f in early + late: f()
        e("s_mov_b32 s27, 0")
        mf = []
        for tn in range(2):
            for tm in range(4):
                xr = F[1]["x"][tm]; wr = F[1]["w"][tn]
                mf.append(lambda tn=tn, tm=tm, xr=xr, wr=wr: e(f"v_mfma_f32_32x32x16_bf16 {acc(tn,tm)}, v[{wr}:{wr+3}], v[{xr}:{xr+3}], {acc(tn,tm)}"))
        rds = []
        for ks in range(4):
            rds += [lambda ks=ks: rw(ks, 0), lambda ks=ks: rx(0, ks), lambda ks=ks: rw(ks, 1)]
        for i, m_ in enumerate(mf):
            m_()
            for _ in range(2 if i < 4 else 1):
                if rds: rds.pop(0)()
        for f in rds: f()
        for tm in range(4):
            mf = []
            for ks in range(4):
                for tn in range(2):
                    def m_(ks=ks, tn=tn, tm=tm):
                        S.wait("lgkm", ("ep", tm, ks, tn), {("w", ks, tn), ("x", tm, ks)})
                        xr = XB[tm & 1][ks]; wr = W15[(ks, tn)]
                        e(f"v_mfma_f32_32x32x16_bf16 {acc(tn,tm)}, v[{wr}:{wr+3}], v[{xr}:{xr+3}], {acc(tn,tm)}")
                    mf.append(m_)
            early = []
            if tm + 1 < 4: early += [lambda ks=ks: rx(tm + 1, ks) for ks in range(4)]
            if tm >= 2: early += [lambda k=k: est(tm - 2, k) for k in range(4)]
            late = epi_list(tm - 1) if tm >= 1 else []
            run_block(mf, early, late)
        if opt.stamp:
            e("s_memtime s[88:89]")
            nstamp[0] = 20
            stamp()
            e("s_mov_b32 s87, s88")
        for k in range(4): est(2, k)
        e("s_nop 7")
        for f in epi_list(3): f()
        for k in range(4): est(3, k)
    if opt.stamp:
        stamp()
        e("s_waitcnt vmcnt(0)")
        stamp()
        stamp_store(e, 26, 62)
    e("s_endpgm")

    S.reset()
    S.lab("L_producer")
    nstamp[0] = 0
    e("s_sub_u32 s21, s18, 4")
    if opt.pprio: e(f"s_setprio {opt.pprio}")
    e("v_lshrrev_b32 v9, 5, v7")
    e("v_and_b32 v11, 31, v7")
    e("s_lshl_b32 s22, s21, 1")
    e("v_add_u32 v9, s22, v9")
    e("v_mul_u32_u24 v2, 114688, v9")
    e("v_lshl_add_u32 v2, v11, 4, v2")
    for j in range(1, 8):
        e(f"s_mov_b32 s{43+j}, {j*14336}")
    e("s_mov_b32 s30, 903680")
    e("s_mov_b32 s31, 0x20000")
    e("s_lshl_b32 s22, s20, 9")
    e("s_waitcnt lgkmcnt(0)")
    e("s_mov_b32 s14, 0")
    e("s_mov_b32 s15, 0")
    e("s_add_u32 s8, s6, s22")
    e("s_addc_u32 s9, s7, 0")
    e("s_and_b32 s9, s9, 0xffff")
    def set_k(which):
        cnt = "s14" if which == "q" else "s15"
        e(f"s_add_u32 s12, s93, {cnt}")
        e(f"s_and_b32 s12, s12, {RM}")
        if RM != 15:
            e(f"s_and_b32 s13, {cnt}, {15 - RM}")
            e("s_or_b32 s12, s12, s13")
        if opt.noadv: e("s_mov_b32 s12, 0")
        if which == "q":
            e("s_mul_i32 s12, s12, 917504")
            e("s_add_u32 s28, s8, s12")
            e("s_addc_u32 s29, s9, 0")
        else:
            e("s_lshl_b32 s12, s12, 7")
            e("s_add_u32 s24, s10, s12")
            e("s_addc_u32 s25, s11, 0")
        e(f"s_add_u32 {cnt}, {cnt}, 1")
    def qb(b): return 256 - 32 * NQ + 32 * b
    def issue_x(u, j):
        if j == 0:
            e("s_add_u32 m0, s23, s33")
            set_k("x")
        if j == 4:
            e("s_add_u32 m0, m0, 0x1000")
            e(f"s_add_u32 s33, s33, 0x8000")
            e(f"s_cmp_eq_u32 s33, {NX*32768}")
            e("s_cselect_b32 s33, 0, s33")
        so = "0" if j == 0 else f"s{50+j}"
        if not opt.nox:
            off = (j & 3) * 1024
            e(f"buffer_load_dwordx4 v{80+(j&3)}, s[24:27], {so} offen offset:{off}{opt.xmod} lds")
            S.issue("vm", ("X", u))
    def issue_q(u, j):
        b = u % NQ
        if j == 0: set_k("q")
        r = qb(b) + 4 * j
        so = "0" if j == 0 else f"s{43+j}"
        if not opt.noq:
            e(f"buffer_load_dwordx4 v[{r}:{r+3}], v2, s[28:31], {so} offen{opt.qmod}")
            S.issue("vm", ("Q", u))
    for j in range(8): issue_q(0, j)
    if opt.stamp:
        e("s_mov_b32 s62, s60")
        nstamp[0] = 1
    e("v_and_b32 v12, 3, v11")
    e("v_bfe_u32 v13, v11, 2, 1")
    e("v_lshrrev_b32 v14, 3, v11")
    e("v_lshlrev_b32 v14, 5, v14")
    e("v_lshl_add_u32 v14, v12, 3, v14")
    e("v_lshl_add_u32 v14, v13, 2, v14")
    e("v_lshl_or_b32 v12, v13, 2, v12")
    e("v_xor_b32 v12, v12, v9")
    e("v_lshlrev_b32 v12, 4, v12")
    e("v_lshl_add_u32 v5, v14, 7, v12")
    e(f"v_add_u32 v5, {WRING}, v5")
    e("v_xor_b32 v6, 64, v5")
    e("v_lshlrev_b32 v3, 4, v11")
    e(f"v_add_u32 v3, {STAB}, v3")
    e("v_lshlrev_b32 v4, 5, v9")
    e(f"v_add_u32 v4, {ATAB}, v4")
    e("s_mov_b32 s92, 0")
    nx0 = 0
    nq0 = 1
    for g in opt.pre.split(","):
        if g == "q":
            for j in range(8): issue_q(nq0, j)
            nq0 += 1
    stamp()
    e("s_barrier")
    for g in opt.pro.split(","):
        if g == "q":
            for j in range(8): issue_q(nq0, j)
            nq0 += 1
    TB = [16, 32]
    def tab_read(u):
        r = TB[u & 1]
        e(f"ds_read_b128 v[{r}:{r+3}], v3");                S.issue("lgkm", ("T", u))
        e(f"ds_read_b128 v[{r+4}:{r+7}], v3 offset:8192");  S.issue("lgkm", ("T", u))
        e(f"ds_read_b128 v[{r+8}:{r+11}], v4");             S.issue("lgkm", ("T", u))
        e(f"ds_read_b128 v[{r+12}:{r+15}], v4 offset:16");  S.issue("lgkm", ("T", u))
        e("v_add_u32 v3, 512, v3")
        e("v_add_u32 v4, 256, v4")
    TT = [48, 56]
    DD = [64, 68, 72, 76]
    tab_read(0)
    S.c("ALIGN_ON") if opt.align else None
    ramp = [int(v) for v in opt.ramp.split(",")]
    NH = len(ramp)
    depth = nq0 + sum(ramp) - NH
    NLOOP = NT - depth
    assert (NLOOP - NH) % 4 == 0 and depth <= NQ - 1, (NLOOP, NH, depth)
    nextq = nq0
    for t in range(-1, NT - 1):
        u = t + 1
        b = u % NQ
        tail = u >= NLOOP
        head = u < NH
        S.emit = head or (u < NH + 4) or tail
        if u == NH:
            S.d(".p2align 6")
            S.lab("L_ploop")
        site = ("tail", u) if tail else (("head", u) if head else b)
        S.c(f"producer iteration u%4={b}" + (" (tail)" if tail else " (head)" if head else ""))
        ng = ramp[u] if head else (0 if tail else 1)
        qlist = list(range(nextq, nextq + ng)); nextq += ng
        tb = TB[u & 1]
        vm = [("q", qq, j) for qq in qlist for j in range(8)]
        def do_vm(n):
            for _ in range(n):
                if vm:
                    k, uu, j = vm.pop(0)
                    (issue_x if k == "x" else issue_q)(uu, j)
        if opt.stamp >= 2: e("s_memtime s[60:61]")
        do_vm(opt.burst)
        if u + 1 < NT: tab_read(u + 1)
        S.wait("lgkm", ("T", site), {("T", u)})
        S.wait("vm", ("Q", site), {("Q", u)})
        par = (u & 1) * 16384
        total = len(vm)
        slot = [0]; issued = [0]
        nsl = opt.nsl
        def slot_vm():
            slot[0] += 1
            k = slot[0] - opt.qs0
            target = 0 if k <= 0 else min(total, (total * k + nsl - 1) // nsl)
            n = target - issued[0]
            if n > 0:
                do_vm(n); issued[0] += n
        def wr(c):
            if opt.nodq or opt.nowr: return
            a = "v5" if c < 2 else "v6"
            e(f"ds_write_b128 {a}, v[{DD[c]}:{DD[c]+3}] offset:{par + c*128}")
            S.issue("lgkm", ("W", u))
        for c in range(4):
            T = TT[c & 1]
            if not opt.nodq:
                for j in range(8):
                    q = qb(b) + 4 * j + c
                    e(f"v_fma_mix_f32 v{T+j}, v{q}, v{tb+c}, v{tb+4+c} op_sel_hi:[1,0,0]")
                    if j == 3: slot_vm()
            else:
                slot_vm()
            slot_vm()
            if opt.wrpos == 1:
                if c == 2: wr(0)
                if c == 3: wr(2)
            if not opt.nodq:
                for j in range(8):
                    e(f"v_mul_f32_e64 v{T+j}, v{T+j}, v{tb+8+j}")
            slot_vm()
            if opt.wrpos == 1 and c == 2: wr(1)
            if not opt.nodq:
                for i in range(4):
                    e(f"v_cvt_pk_bf16_f32 v{DD[c]+i}, v{T+2*i}, v{T+2*i+1}")
            if opt.wrpos == 0: wr(c)
            if opt.wrpos == 1 and c == 3: wr(3)
            if opt.wrpos == 2 and c == 3:
                for cc in range(4): wr(cc)
            slot_vm()
        do_vm(99)
        S.wait("lgkm", ("W", site), {("W", u)})
        if opt.stamp >= 2:
            e("s_waitcnt lgkmcnt(0)")
            e("s_mov_b32 m0, s92"); e("s_nop 0"); e("v_writelane_b32 v100, s60, m0")
            e("s_add_u32 s92, s92, 1")
        e("s_barrier")
        if not tail and not head and (u - NH) % 4 == 3:
            e(f"s_cmp_lt_u32 s14, {NT}")
            e("s_cbranch_scc1 L_ploop")
    S.emit = True
    S.c("ALIGN_OFF")
    if opt.stamp:
        if opt.stamp >= 2:
            e("s_memtime s[60:61]")
            e("s_waitcnt lgkmcnt(0)")
            e("s_mov_b32 m0, s92"); e("s_nop 0"); e("v_writelane_b32 v100, s60, m0")
            e("s_lshl_b32 s56, s2, 11")
            e("s_lshl_b32 s57, s18, 8")
            e("s_add_u32 s56, s56, s57")
            e("s_add_u32 s56, s56, 128")
            e("s_add_u32 s56, s58, s56")
            e("s_addc_u32 s57, s59, 0")
            e("v_lshlrev_b32 v101, 2, v7")
            e("v_cmp_gt_u32 vcc, 32, v7")
            e("s_and_saveexec_b64 s[44:45], vcc")
            e("global_store_dword v101, v100, s[56:57]")
            e("s_mov_b64 exec, s[44:45]")
        stamp()
        stamp_store(e, 8, 62)
    S.lab("L_end")
    e("s_endpgm")
    if NPF:
        S.lab("L_prefetch")
        if opt.pf == 2:
            e("s_load_dwordx2 s[4:5], s[0:1], 0")
            e("v_lshrrev_b32 v1, 6, v0")
            e("v_and_b32 v7, 63, v0")
            e("s_and_b32 s16, s2, 7")
            e("v_readfirstlane_b32 s18, v1")
            e(f"s_sub_u32 s17, s2, {0 if opt.pffirst else NWG}")
            e("s_lshr_b32 s17, s17, 3")
            e("s_and_b32 s19, s16, 1")
            e("s_lshl_b32 s19, s19, 2")
            e("s_add_u32 s19, s19, s17")
            e(f"s_mul_i32 s93, s17, {opt.rm}")
            if opt.rx:
                e("s_and_b32 s21, s16, 1")
                e(f"s_mul_i32 s21, s21, {opt.rx}")
                e("s_add_u32 s93, s93, s21")
            e(f"s_and_b32 s93, s93, {RM}")
            e("s_and_b32 s20, s18, 3")
            e("s_lshr_b32 s21, s18, 2")
            e("s_lshl_b32 s20, s20, 6")
            e("v_add_u32 v2, s20, v7")
            e("v_lshlrev_b32 v2, 11, v2")
            e("s_lshl_b32 s22, s19, 19")
            e("s_mov_b32 s26, 522368")
            e("s_mov_b32 s27, 0x20000")
            e(f"s_add_u32 s6, s21, {opt.pf0}")
            e("s_waitcnt lgkmcnt(0)")
            e("s_add_u32 s4, s4, s22")
            e("s_addc_u32 s5, s5, 0")
            e("s_and_b32 s5, s5, 0xffff")
            S.lab("L_pfx")
            e("s_add_u32 s12, s93, s6")
            e(f"s_and_b32 s12, s12, {RM}")
            e(f"s_and_b32 s13, s6, {15 - RM}")
            e("s_or_b32 s12, s12, s13")
            e("s_lshl_b32 s12, s12, 7")
            e("s_add_u32 s24, s4, s12")
            e("s_addc_u32 s25, s5, 0")
            e("buffer_load_dword v8, v2, s[24:27], 0 offen")
            e("s_add_u32 s6, s6, 2")
            e(f"s_cmp_lt_u32 s6, {NT}")
            e("s_cbranch_scc1 L_pfx")
            e("s_endpgm")
        if opt.pf == 1:
            e("s_load_dwordx2 s[6:7], s[0:1], 8")
            e("v_lshrrev_b32 v1, 6, v0")
            e("v_and_b32 v7, 63, v0")
            e("s_and_b32 s16, s2, 7")
            e("v_readfirstlane_b32 s18, v1")
            e(f"s_sub_u32 s17, s2, {0 if opt.pffirst else NWG}")
            e("s_lshr_b32 s17, s17, 3")
            e("s_cmp_ge_u32 s18, 7")
            e("s_cbranch_scc1 L_end")
            e("s_lshr_b32 s20, s16, 1")
            e("s_mul_i32 s20, s20, 7")
            e("s_add_u32 s20, s20, s18")
            e(f"s_mul_i32 s21, s17, {opt.rm}")
            e(f"s_mul_i32 s22, s18, {opt.rn}")
            e("s_add_u32 s21, s21, s22")
            e("s_add_u32 s21, s21, 1")
            e(f"s_and_b32 s21, s21, {RM}")
            e("v_mul_u32_u24 v2, 14336, v7")
            e("s_lshl_b32 s22, s20, 9")
            e("s_mov_b32 s30, 903680")
            e("s_mov_b32 s31, 0x20000")
            e("s_waitcnt lgkmcnt(0)")
            e("s_add_u32 s8, s6, s22")
            e("s_addc_u32 s9, s7, 0")
            e("s_and_b32 s9, s9, 0xffff")
            phases = []
            if opt.pfa: phases.append(("A", 0))
            phases.append(("B", 8))
            for name, add in phases:
                if name == "A":
                    e(f"s_cmp_ge_u32 s18, {opt.pfa}")
                    e("s_cbranch_scc1 L_pfB")
                else:
                    S.lab("L_pfB")
                e(f"s_add_u32 s12, s21, {add}")
                e("s_mul_i32 s12, s12, 917504")
                e("s_add_u32 s28, s8, s12")
                e("s_addc_u32 s29, s9, 0")
                for i in range(4):
                    e(f"buffer_load_dword v{8+i}, v2, s[28:31], 0 offen offset:{i*128}")
            e("s_endpgm")


    S.lab("L_codeend")
    e("s_endpgm")
    hdr = HEADER + f"; @launch grid=({NWG + NPF},1,1) block=(512,1,1) lds={LDS}\n"
    pre = f""".amdgcn_target "amdgcn-amd-amdhsa--gfx950"
.text
.globl {KNAME}
.p2align 8
.type {KNAME},@function
{KNAME}:
"""
    post = f""".section .rodata,"a"
.p2align 6
.amdhsa_kernel {KNAME}
  .amdhsa_next_free_vgpr 256
  .amdhsa_next_free_sgpr 96
  .amdhsa_accum_offset 256
  .amdhsa_group_segment_fixed_size 0
  .amdhsa_kernarg_size 64
  .amdhsa_user_sgpr_count 2
  .amdhsa_user_sgpr_kernarg_segment_ptr 1
  .amdhsa_system_sgpr_workgroup_id_x 1
.end_amdhsa_kernel
"""
    return hdr + pre + "\n".join(S.resolve()) + "\n" + post

def parse(argv=None):
    ap = argparse.ArgumentParser()
    ap.add_argument("-o", default="k.s")
    ap.add_argument("--stamp", type=int, default=0)
    for f in ("nomfma", "nodq", "nox", "noq", "noc", "noadv", "nowr", "fake16"):
        ap.add_argument("--" + f, action="store_true")
    ap.add_argument("--xpos", default="6,7")
    ap.add_argument("--nsl", type=int, default=16)
    ap.add_argument("--qs0", type=int, default=0)
    ap.add_argument("--xph", default="0,1,2,3")
    ap.add_argument("--pf", type=int, default=0)
    ap.add_argument("--pfa", type=int, default=4)
    ap.add_argument("--epo", type=int, default=0)
    ap.add_argument("--pre", default="")
    ap.add_argument("--pf0", type=int, default=1)
    ap.add_argument("--pffirst", type=int, default=0)
    ap.add_argument("--rx", type=int, default=0)
    ap.add_argument("--cpf", type=int, default=0)
    ap.add_argument("--ramp", default="1,2")
    ap.add_argument("--pro", default="")
    ap.add_argument("--align", type=int, default=1)
    ap.add_argument("--cprio", type=int, default=3)
    ap.add_argument("--pprio", type=int, default=0)
    ap.add_argument("--rotn", type=int, default=8)
    ap.add_argument("--rm", type=int, default=2)
    ap.add_argument("--rn", type=int, default=1)
    ap.add_argument("--wrpos", type=int, default=0)
    ap.add_argument("--burst", type=int, default=0)
    ap.add_argument("--rpm", type=int, default=1)
    ap.add_argument("--stmod", default="nt")
    ap.add_argument("--qmod", default="")
    ap.add_argument("--xmod", default="")
    opt = ap.parse_args(argv)
    for k in ("stmod", "qmod", "xmod"):
        v = getattr(opt, k)
        if v: setattr(opt, k, " " + v)
    return opt

if __name__ == "__main__":
    opt = parse()
    open(opt.o, "w").write(gen(opt))
```

```python
import sys, argparse, re

KNAME = "standalone__weight_only_int_omniquant__prompt_kernel"
HEADER = """; Kernarg layout for this problem (64 bytes, ptrs only, base s[0:1]):
;
;   waves 0-3 (consumers): 128x64 of the tile each, v_mfma_f32_32x32x16_bf16 (D = W^T x^T), fragments from LDS;
;   waves 4-7 (producers): qw rows -> VGPR, W = (q*s - z*s)*act via v_fma_mix (q read as an f16 denormal, s pre-scaled
;                          by 2^24; exact for 0 <= q < 2048), bf16 pack, ds_write into a 2-stage W ring
; Scales/zeros/act are expanded to f32 tables in LDS once.  One s_barrier per 64-deep K step.
"""
NT = 16

def isize(line):
    s = line.strip()
    if not s or s.startswith(";") or s.endswith(":") or s.startswith("."): return 0
    s = s.split(";")[0].strip()
    op = s.split()[0]
    args = s[len(op):]
    def has_lit():
        for tok in re.split(r"[,\s]+", args):
            tok = tok.strip()
            if not tok: continue
            if re.fullmatch(r"-?(0x[0-9a-fA-F]+|\d+)", tok):
                v = int(tok, 0)
                if v < -16 or v > 64: return True
            elif re.fullmatch(r"L_\w+-\w+", tok): return True
        return False
    if op.startswith(("ds_", "buffer_", "global_", "flat_", "s_load", "s_memtime", "s_memrealtime", "v_mfma", "v_pk_", "v_fma_mix")): return 8
    if op in ("s_waitcnt", "s_barrier", "s_nop", "s_endpgm", "s_setprio", "s_branch", "s_sleep") or op.startswith("s_cbranch"): return 4
    if op.startswith("s_"):
        if op in ("s_movk_i32", "s_addk_i32", "s_mulk_i32"): return 4
        return 8 if has_lit() else 4
    if op.startswith("v_"):
        vop3 = ("v_fma_f32", "v_cvt_pk_bf16_f32", "v_lshl_add_u32", "v_lshl_or_b32", "v_mul_lo_u32", "v_bfe_u32", "v_add3_u32", "v_perm_b32", "v_and_or_b32", "v_readlane_b32", "v_writelane_b32", "v_cmp_gt_u32")
        if op in vop3 or op.endswith("_e64"): return 8
        return 8 if has_lit() else 4
    raise ValueError(line)

class Stream:
    def __init__(self):
        self.L = []
        self.sites = {}
        self.emit = True
        self.maxn = {"vm": 63, "lgkm": 15}
        self.reset()
    def reset(self):
        self.q = {"vm": [], "lgkm": []}
    def e(self, s):
        if self.emit: self.L.append("    " + s)
    def lab(self, s):
        if self.emit: self.L.append(s + ":")
    def c(self, s):
        if self.emit: self.L.append("    ; " + s)
    def d(self, s):
        if self.emit: self.L.append(s)
    def issue(self, ctr, tag): self.q[ctr].append(tag)
    def wait(self, ctr, site, tags):
        q = self.q[ctr]
        last = -1
        for i, t in enumerate(q):
            if t in tags: last = i
        n = self.maxn[ctr] if last < 0 else min(len(q) - 1 - last, self.maxn[ctr])
        key = (ctr, site)
        self.sites[key] = min(self.sites.get(key, 99), n)
        if self.emit: self.L.append(("wait", key))
    def waitall(self, ctr):
        self.q[ctr] = []
        self.e(f"s_waitcnt {'vmcnt' if ctr=='vm' else 'lgkmcnt'}(0)")
    def resolve(self, align_regions=True):
        out = []
        for s in self.L:
            if isinstance(s, tuple):
                ctr, site = s[1]
                n = self.sites[s[1]]
                if n >= self.maxn[ctr]: continue
                out.append(f"    s_waitcnt {'vmcnt' if ctr=='vm' else 'lgkmcnt'}({n})")
            else:
                out.append(s)
        res = []
        off = 0
        on = False
        for s in out:
            t = s.strip()
            if t == "; ALIGN_ON": on = True
            if t == "; ALIGN_OFF": on = False
            if t.startswith(".p2align"):
                a = 1 << int(t.split()[1].rstrip(","))
                off = (off + a - 1) // a * a
                res.append(s); continue
            sz = isize(s)
            if on and sz == 8 and off % 8 == 4:
                res.append("    s_nop 0"); off += 4
            res.append(s); off += sz
        return res

def stamp_store(e, nst, first):
    e("s_waitcnt lgkmcnt(0)")
    e("s_lshl_b32 s56, s2, 11")
    e("s_lshl_b32 s57, s18, 8")
    e("s_add_u32 s56, s56, s57")
    e("s_add_u32 s58, s58, s56")
    e("s_addc_u32 s59, s59, 0")
    e("s_mov_b64 exec, 1")
    e("v_mov_b32 v24, 0")
    for i in range(nst):
        e(f"v_mov_b32 v16, s{first+i}")
        e(f"global_store_dword v24, v16, s[58:59] offset:{4*i}")

def gen(opt):
    NWG = 224
    NX = 3
    NQ = 4
    XRING = 0
    WRING = NX * 32768
    STAB = WRING + 32768
    ZTAB = STAB + 8192
    ATAB = ZTAB + 8192
    LDS = ATAB + 4096 + 512
    EPI = 32768
    S = Stream()
    e = S.e
    nstamp = [0]
    def stamp():
        if not opt.stamp: return
        e("s_memrealtime s[60:61]")
        e("s_waitcnt lgkmcnt(0)")
        e(f"s_mov_b32 s{62+nstamp[0]}, s60")
        nstamp[0] += 1
    RM = opt.rotn - 1
    NPF = 32 if opt.pf else 0
    e(f"s_cmp_ge_u32 s2, {NWG + NPF}")
    e("s_cbranch_scc1 L_end")
    if NPF and opt.pffirst:
        e(f"s_cmp_lt_u32 s2, {NPF}")
        e("s_cbranch_scc1 L_prefetch")
        e(f"s_sub_u32 s2, s2, {NPF}")
    elif NPF:
        e(f"s_cmp_ge_u32 s2, {NWG}")
        e("s_cbranch_scc1 L_prefetch")
    if opt.stamp:
        e("s_memrealtime s[60:61]")
    e("s_load_dwordx8 s[4:11], s[0:1], 0")
    e("s_load_dwordx4 s[12:15], s[0:1], 32")
    if opt.cpf:
        e("s_getpc_b64 s[44:45]")
        S.lab("L_pc")
        e("s_sub_u32 s44, s44, L_pc-" + KNAME)
        e("s_subb_u32 s45, s45, 0")
        e("v_lshlrev_b32 v30, 7, v0")
        e("v_min_u32 v30, L_codeend-" + KNAME + ", v30")
        e("global_load_dword v126, v30, s[44:45]")
    if opt.stamp:
        e("s_load_dwordx2 s[58:59], s[0:1], 56")
    e("v_lshrrev_b32 v1, 6, v0")
    e("s_and_b32 s16, s2, 7")
    e("s_lshr_b32 s17, s2, 3")
    e("v_readfirstlane_b32 s18, v1")
    e("s_and_b32 s19, s16, 1")
    e("s_lshl_b32 s19, s19, 2")
    e("s_and_b32 s20, s17, 3")
    e("s_lshr_b32 s21, s17, 2")
    e(f"s_mul_i32 s93, s20, {opt.rm}")
    e("s_add_u32 s19, s19, s20")
    e("s_lshr_b32 s20, s16, 1")
    e("s_mul_i32 s20, s20, 7")
    e("s_add_u32 s20, s20, s21")
    e(f"s_mul_i32 s21, s21, {opt.rn}")
    e("s_add_u32 s93, s93, s21")
    if opt.rx:
        e("s_and_b32 s21, s16, 1")
        e(f"s_mul_i32 s21, s21, {opt.rx}")
        e("s_add_u32 s93, s93, s21")
    e(f"s_and_b32 s93, s93, {RM}")
    e("v_and_b32 v7, 63, v0")
    e("s_cmp_ge_u32 s18, 4")
    e("s_cbranch_scc1 L_producer")

    S.c("consumer waves")
    e(f"s_setprio {opt.cprio}")
    e("v_lshrrev_b32 v12, 4, v0")
    e("v_and_b32 v13, 15, v0")
    e("v_mul_u32_u24 v14, 7168, v12")
    e("v_lshl_add_u32 v14, v13, 4, v14")
    e("v_lshlrev_b32 v15, 3, v0")
    e("s_lshl_b32 s23, s20, 8")
    e("s_sub_u32 s34, 114688, s23")
    e("s_mov_b32 s35, 0x20000")
    e("s_mov_b32 s38, s34")
    e("s_mov_b32 s39, 0x20000")
    e("s_mov_b32 s42, 2048")
    e("s_mov_b32 s43, 0x20000")
    e("s_waitcnt lgkmcnt(0)")
    e("s_add_u32 s32, s8, s23")
    e("s_addc_u32 s33, s9, 0")
    e("s_and_b32 s33, s33, 0xffff")
    e("s_add_u32 s36, s10, s23")
    e("s_addc_u32 s37, s11, 0")
    e("s_and_b32 s37, s37, 0xffff")
    e("s_mov_b32 s40, s12")
    e("s_and_b32 s41, s13, 0xffff")
    e("buffer_load_dwordx4 v[16:19], v14, s[32:35], 0 offen")
    e("buffer_load_dwordx4 v[20:23], v14, s[36:39], 0 offen")
    e("buffer_load_dwordx2 v[24:25], v15, s[40:43], 0 offen")
    e("v_lshrrev_b32 v8, 3, v7")
    e("s_lshl_b32 s23, s18, 6")
    e("v_add_u32 v8, s23, v8")
    e("v_lshrrev_b32 v9, 5, v7")
    e("v_lshrrev_b32 v10, 4, v7")
    e("v_xor_b32 v10, v9, v10")
    e("v_and_b32 v10, 1, v10")
    e("v_lshlrev_b32 v10, 2, v10")
    e("v_and_b32 v11, 7, v7")
    e("v_xor_b32 v10, v10, v11")
    e("v_lshlrev_b32 v10, 4, v10")
    e("v_lshl_add_u32 v112, v8, 11, v10")
    for jj in range(1, 4):
        e(f"v_xor_b32 v{112+jj}, {jj<<4}, v112")
    for j in range(1, 8):
        e(f"s_mov_b32 s{47+j}, {j*16384 - (j&3)*1024}")
    e("s_lshl_b32 s55, s18, 13")
    e("s_lshl_b32 s23, s19, 19")
    e("s_add_u32 s4, s4, s23")
    e("s_addc_u32 s5, s5, 0")
    e("s_and_b32 s5, s5, 0xffff")
    e("s_mov_b32 s10, 522368")
    e("s_mov_b32 s11, 0x20000")
    e("s_mov_b32 s6, 0")
    e("s_mov_b32 s7, 0")
    def cx_set():
        e("s_add_u32 m0, s55, s7")
        e("s_add_u32 s12, s93, s6")
        e(f"s_and_b32 s12, s12, {RM}")
        if RM != 15:
            e(f"s_and_b32 s13, s6, {15 - RM}")
            e("s_or_b32 s12, s12, s13")
        if opt.noadv: e("s_mov_b32 s12, 0")
        e("s_lshl_b32 s12, s12, 7")
        e("s_add_u32 s8, s4, s12")
        e("s_addc_u32 s9, s5, 0")
        e("s_add_u32 s6, s6, 1")
    def cx_issue(u, j):
        if j == 0: cx_set()
        if j == 4:
            e("s_add_u32 m0, m0, 0x1000")
            e("s_add_u32 s7, s7, 0x8000")
            e(f"s_cmp_eq_u32 s7, {NX*32768}")
            e("s_cselect_b32 s7, 0, s7")
        so = "0" if j == 0 else f"s{47+j}"
        if not opt.nox:
            e(f"buffer_load_dwordx4 v{112+(j&3)}, s[8:11], {so} offen offset:{(j&3)*1024}{opt.xmod} lds")
            S.issue("vm", ("X", u))
    for j in range(8): cx_issue(0, j)
    if opt.stamp:
        e("s_mov_b32 s62, s60")
        nstamp[0] = 1
    e("s_and_b32 s21, s18, 1")
    e("s_lshr_b32 s22, s18, 1")
    e("v_and_b32 v10, 31, v7")
    e("v_lshrrev_b32 v11, 5, v7")
    e("v_lshrrev_b32 v2, 3, v10")
    e("v_lshrrev_b32 v3, 2, v10")
    e("v_lshrrev_b32 v4, 1, v10")
    e("v_xor_b32 v3, v3, v4")
    e("v_and_b32 v3, 1, v3")
    e("v_lshl_or_b32 v2, v3, 2, v2")
    e("v_xor_b32 v2, v2, v11")
    e("v_lshlrev_b32 v2, 4, v2")
    e("v_lshl_add_u32 v9, v10, 7, v2")
    e("s_lshl_b32 s23, s21, 14")
    e("s_lshl_b32 s24, s22, 13")
    e(f"s_add_u32 s24, s24, {WRING}")
    XA = [2, 3, 4, 5]
    WA = [64, 65, 66, 67]
    for ks in range(4):
        e(f"v_xor_b32 v8, {ks*32}, v9")
        e(f"v_add_u32 v{XA[ks]}, s23, v8")
        e(f"v_add_u32 v{WA[ks]}, s24, v8")
    for r in range(128, 256):
        e(f"v_mov_b32 v{r}, 0")
    e("s_mov_b32 s31, 0xffff0000")
    e("s_mov_b32 s30, 0x4b800000")
    e("v_subrev_u32 v74, s93, v12")
    e(f"v_and_b32 v74, {RM}, v74")
    if RM != 15:
        e(f"v_and_b32 v75, {15 - RM}, v12")
        e("v_or_b32 v74, v74, v75")
    e("v_lshlrev_b32 v72, 9, v74")
    e("v_lshl_add_u32 v72, v13, 5, v72")
    e(f"v_add_u32 v72, {STAB}, v72")
    e("v_lshlrev_b32 v73, 8, v74")
    e("v_lshl_add_u32 v73, v13, 4, v73")
    e(f"v_add_u32 v73, {ATAB}, v73")
    e("s_waitcnt vmcnt(%d)" % (0 if opt.nox else 8))
    for d in range(4):
        e(f"v_lshlrev_b32 v{80+2*d}, 16, v{16+d}")
        e(f"v_and_b32 v{81+2*d}, s31, v{16+d}")
        e(f"v_lshlrev_b32 v{88+2*d}, 16, v{20+d}")
        e(f"v_and_b32 v{89+2*d}, s31, v{20+d}")
    for d in range(8):
        e(f"v_mul_f32_e64 v{88+d}, -v{88+d}, v{80+d}")
    for d in range(8):
        e(f"v_mul_f32 v{80+d}, s30, v{80+d}")
    for d in range(2):
        e(f"v_lshlrev_b32 v{96+2*d}, 16, v{24+d}")
        e(f"v_and_b32 v{97+2*d}, s31, v{24+d}")
    e("ds_write_b128 v72, v[80:83]")
    e("ds_write_b128 v72, v[84:87] offset:16")
    e("ds_write_b128 v72, v[88:91] offset:8192")
    e("ds_write_b128 v72, v[92:95] offset:8208")
    e("ds_write_b128 v73, v[96:99]")
    e("s_lshl_b32 s25, s19, 8")
    e("s_lshl_b32 s26, s21, 7")
    e("s_add_u32 s25, s25, s26")
    e("s_mul_i32 s25, s25, 7168")
    e("s_lshl_b32 s26, s20, 8")
    e("s_lshl_b32 s27, s22, 7")
    e("s_add_u32 s26, s26, s27")
    e("s_add_u32 s25, s25, s26")
    e("s_add_u32 s40, s14, s25")
    e("s_addc_u32 s41, s15, 0")
    e("s_and_b32 s41, s41, 0xffff")
    e("s_sub_u32 s42, 14680064, s25")
    e("s_mov_b32 s43, 0x20000")
    e("v_and_b32 v12, 7, v10")
    e("v_lshlrev_b32 v13, 1, v11")
    e("v_xor_b32 v12, v12, v13")
    e("v_lshlrev_b32 v12, 4, v12")
    e("v_lshl_add_u32 v12, v10, 7, v12")
    e("s_lshl_b32 s26, s18, 14")
    e(f"s_add_u32 s26, s26, {EPI}")
    e("v_add_u32 v12, s26, v12")
    EW = [72, 73, 74, 75]
    e("s_waitcnt lgkmcnt(0)")
    for tn in range(2):
        for q in range(2):
            e(f"v_xor_b32 v{EW[tn*2+q]}, {(4*tn+q)<<4}, v12")
    e("v_lshrrev_b32 v13, 3, v7")
    e("v_and_b32 v14, 7, v7")
    e("v_xor_b32 v15, v14, v13")
    e("v_lshlrev_b32 v15, 4, v15")
    e("v_lshl_add_u32 v15, v13, 7, v15")
    e("v_add_u32 v76, s26, v15")
    e("v_mul_u32_u24 v77, 7168, v13")
    e("v_lshl_add_u32 v77, v14, 4, v77")
    e("s_mov_b32 s28, 0")
    e("s_mov_b32 s29, 0")
    e("s_mov_b32 s44, 0x8000")
    e("s_mov_b32 s45, 0xffff0000")
    e("s_barrier")
    stamp()
    for j in range(8): cx_issue(1, j)
    F = [dict(x=[16, 20, 24, 28], w=[32, 36]), dict(x=[40, 44, 48, 52], w=[56, 60])]
    def acc(tn, tm):
        b = 128 + (tn * 4 + tm) * 16
        return f"v[{b}:{b+15}]"
    def rd(buf, kind, idx, t, ks):
        if opt.noc: return
        if kind == "x":
            r = F[buf]["x"][idx]
            e(f"ds_read_b128 v[{r}:{r+3}], v{XA[ks]} offset:{idx*4096}")
        else:
            r = F[buf]["w"][idx]; off = idx * 4096 + (t & 1) * 16384
            e(f"ds_read_b128 v[{r}:{r+3}], v{WA[ks]} offset:{off}")
        S.issue("lgkm", (t, ks, kind, idx))
    order = [("w", 0), ("x", 0), ("x", 1), ("x", 2), ("x", 3), ("w", 1)]
    def phase(mf, rdspec, site, tm_major=False, after=None, xd=None):
        if tm_major: mfs = [(tn, tm) for tm in range(4) for tn in range(2)]
        else: mfs = [(tn, tm) for tn in range(2) for tm in range(4)]
        reads = list(order) if rdspec else []
        ri = 0
        for mi, (tn, tm) in enumerate(mfs):
            for _ in range(opt.rpm):
                if ri < len(reads):
                    kind, idx = reads[ri]; ri += 1
                    rd(rdspec[2], kind, idx, rdspec[0], rdspec[1])
            t, ks, buf = mf
            if mi <= 4: S.wait("lgkm", (site, mi), {(t, ks, "w", tn), (t, ks, "x", tm)})
            if not opt.nomfma:
                xr = F[buf]["x"][tm]; wr = F[buf]["w"][tn]
                if opt.fake16:
                    b0 = 128 + (tn * 4 + tm) * 16 + (ks & 1) * 8
                    xr2 = F[buf]["x"][(tm + 1) % 4]
                    e(f"v_mfma_f32_16x16x32_bf16 v[{b0}:{b0+3}], v[{wr}:{wr+3}], v[{xr}:{xr+3}], v[{b0}:{b0+3}]")
                    e(f"v_mfma_f32_16x16x32_bf16 v[{b0+4}:{b0+7}], v[{wr}:{wr+3}], v[{xr2}:{xr2+3}], v[{b0+4}:{b0+7}]")
                else:
                    e(f"v_mfma_f32_32x32x16_bf16 {acc(tn,tm)}, v[{wr}:{wr+3}], v[{xr}:{xr+3}], {acc(tn,tm)}")
            if after and mi == 6: after()
            if xd and mi in xd[1]:
                if xd[2]: cx_issue(xd[0], xd[2].pop(0))
    def advance_stage():
        e("s_cmp_eq_u32 s29, 2")
        e("s_cselect_b32 s46, s45, s44")
        e("s_cselect_b32 s47, -1, s29")
        e("s_add_u32 s29, s47, 1")
        for ks in range(4):
            e(f"v_add_u32 v{XA[ks]}, s46, v{XA[ks]}")
    e("s_waitcnt vmcnt(%d)" % (0 if opt.nox else 8))
    e("s_barrier")
    if opt.stamp:
        e("s_memtime s[88:89]")
        stamp()
        e("s_mov_b32 s86, s88")
    for kind, idx in order: rd(0, kind, idx, 0, 0)
    _q = list(S.q["vm"])
    n0 = len(opt.xpos.split(",")) if "0" in opt.xph.split(",") else 0
    for jj in range(n0): cx_issue(2, jj)
    S.q["vm"] = _q
    e("s_branch L_cB0")
    S.d(".p2align 6")
    S.lab("L_cloop")
    S.emit = True
    saveL = S.L
    body = {}
    xpos = [int(v) for v in opt.xpos.split(",")]
    for t in range(NT):
        par = t & 1
        tail = t >= NT - 2
        site0 = ("tail", par) if tail else par
        S.L = []
        S.emit = True
        js = list(range(8))
        xd = None if tail else (t + 2, xpos, js)
        xph = [int(v) for v in opt.xph.split(",")]
        def xdp(p): return xd if p in xph else None
        if opt.epo and t == NT - 1:
            body[t] = []
            continue
        if t > 0:
            S.wait("vm", ("X", site0), {("X", t)})
            S.waitall("lgkm")
            e("s_barrier")
            phase((t-1, 3, 1), (t, 0, 0), (site0, 0), xd=xdp(0))
        else:
            saveL_extra = []
        if par == 0 and not tail: S.lab("L_cB0")
        if t == 0:
            for _ in range(n0):
                js.pop(0); S.issue("vm", ("X", 2))
        phase((t, 0, 0), (t, 1, 1), (site0, 1), xd=xdp(1))
        phase((t, 1, 1), (t, 2, 0), (site0, 2), xd=xdp(2))
        phase((t, 2, 0), (t, 3, 1), (site0, 3), after=advance_stage, xd=xdp(3))
        if par == 1 and not tail:
            e("s_add_u32 s28, s28, 1")
            e(f"s_cmp_lt_u32 s28, {NT//2 - 1}")
            e("s_cbranch_scc1 L_cloop")
        if t in (2, 3, NT - 2, NT - 1): body[t] = S.L
    S.L = saveL + body[2] + body[3] + body[NT - 2] + body[NT - 1]
    if not opt.epo:
        S.waitall("lgkm")
        phase((NT-1, 3, 1), None, ("fin", 0), tm_major=True)
        if opt.stamp:
            e("s_memtime s[88:89]")
            nstamp[0] = 20
            stamp()
            e("s_mov_b32 s87, s88")
        S.c("epilogue")
        S.reset()
        T = 80
        R = 16
        e("s_mov_b32 s27, 0")
        sidx = [0]
        def store(it):
            rr = R + (it % 8) * 4
            S.wait("lgkm", ("st", it), {("R", it)})
            e(f"buffer_store_dwordx4 v[{rr}:{rr+3}], v77, s[40:43], s27 offen{opt.stmod}")
            e(f"s_add_u32 s27, s27, 57344")
        if opt.stamp: e("s_nop 7")
        for tm in range(4):
            for tn in range(2):
                b = 128 + (tn * 4 + tm) * 16
                tb = T + ((tm * 2 + tn) % 4) * 8
                if tm == 3 and tn == 0 and not opt.stamp: e("s_nop 3")
                for d in range(8):
                    e(f"v_cvt_pk_bf16_f32 v{tb+d}, v{b+2*d}, v{b+2*d+1}")
                for q in range(2):
                    e(f"ds_write_b128 v{EW[tn*2+q]}, v[{tb+4*q}:{tb+4*q+3}] offset:{tm*4096}")
                    S.issue("lgkm", ("EWr", tm))
                if tm > 0:
                    store((tm - 1) * 4 + tn * 2); store((tm - 1) * 4 + tn * 2 + 1)
            for k in range(4):
                it = tm * 4 + k
                r = R + (it % 8) * 4
                e(f"ds_read_b128 v[{r}:{r+3}], v76 offset:{it*1024}")
                S.issue("lgkm", ("R", it))
        for it in range(12, 16): store(it)
    else:
        S.c("last K step: accumulators finish row block by row block; the epilogue overlaps the MFMAs")
        t = NT - 1
        e("s_waitcnt vmcnt(0)")
        S.waitall("lgkm")
        S.reset()
        e("s_barrier")
        W15 = {(ks, tn): 96 + (ks * 2 + tn) * 4 for ks in range(4) for tn in range(2)}
        XB = [[16 + 4 * ks for ks in range(4)], [40 + 4 * ks for ks in range(4)]]
        SR = [32, 36, 56, 60]
        TC = [80, 88]
        def rw(ks, tn):
            r = W15[(ks, tn)]
            e(f"ds_read_b128 v[{r}:{r+3}], v{WA[ks]} offset:{tn*4096 + (t & 1)*16384}")
            S.issue("lgkm", ("w", ks, tn))
        def rx(tm, ks):
            r = XB[tm & 1][ks]
            e(f"ds_read_b128 v[{r}:{r+3}], v{XA[ks]} offset:{tm*4096}")
            S.issue("lgkm", ("x", tm, ks))
        def cvt(tm, tn, d):
            b_ = 128 + (tn * 4 + tm) * 16
            e(f"v_cvt_pk_bf16_f32 v{TC[tn]+d}, v{b_+2*d}, v{b_+2*d+1}")
        def ewr(tm, tn, q):
            e(f"ds_write_b128 v{EW[tn*2+q]}, v[{TC[tn]+4*q}:{TC[tn]+4*q+3}] offset:{tm*4096}")
            S.issue("lgkm", ("EWr", tm))
        def erd(tm, k):
            it = tm * 4 + k
            e(f"ds_read_b128 v[{SR[k]}:{SR[k]+3}], v76 offset:{it*1024}")
            S.issue("lgkm", ("R", it))
        def est(tm, k):
            it = tm * 4 + k
            S.wait("lgkm", ("st", it), {("R", it)})
            e(f"buffer_store_dwordx4 v[{SR[k]}:{SR[k]+3}], v77, s[40:43], s27 offen{opt.stmod}")
            e(f"s_add_u32 s27, s27, 57344")
        def epi_list(tm):
            fl = []
            for tn in range(2):
                for d in range(8): fl.append(lambda tn=tn, d=d: cvt(tm, tn, d))
                for q in range(2): fl.append(lambda tn=tn, q=q: ewr(tm, tn, q))
            for k in range(4): fl.append(lambda k=k: erd(tm, k))
            return fl
        def run_block(mfmas, early, late):
            n = len(mfmas)
            for i, mf in enumerate(mfmas):
                mf()
                rem = n - i
                k = -(-len(early) // max(1, min(rem, 2))) if i < 2 else len(early)
                for _ in range(min(k, len(early))): early.pop(0)()
                if i >= 2:
                    k = -(-len(late) // rem)
                    for _ in range(min(k, len(late))): late.pop(0)()
            for f in early + late: f()
        e("s_mov_b32 s27, 0")
        mf = []
        for tn in range(2):
            for tm in range(4):
                xr = F[1]["x"][tm]; wr = F[1]["w"][tn]
                mf.append(lambda tn=tn, tm=tm, xr=xr, wr=wr: e(f"v_mfma_f32_32x32x16_bf16 {acc(tn,tm)}, v[{wr}:{wr+3}], v[{xr}:{xr+3}], {acc(tn,tm)}"))
        rds = []
        for ks in range(4):
            rds += [lambda ks=ks: rw(ks, 0), lambda ks=ks: rx(0, ks), lambda ks=ks: rw(ks, 1)]
        for i, m_ in enumerate(mf):
            m_()
            for _ in range(2 if i < 4 else 1):
                if rds: rds.pop(0)()
        for f in rds: f()
        for tm in range(4):
            mf = []
            for ks in range(4):
                for tn in range(2):
                    def m_(ks=ks, tn=tn, tm=tm):
                        S.wait("lgkm", ("ep", tm, ks, tn), {("w", ks, tn), ("x", tm, ks)})
                        xr = XB[tm & 1][ks]; wr = W15[(ks, tn)]
                        e(f"v_mfma_f32_32x32x16_bf16 {acc(tn,tm)}, v[{wr}:{wr+3}], v[{xr}:{xr+3}], {acc(tn,tm)}")
                    mf.append(m_)
            early = []
            if tm + 1 < 4: early += [lambda ks=ks: rx(tm + 1, ks) for ks in range(4)]
            if tm >= 2: early += [lambda k=k: est(tm - 2, k) for k in range(4)]
            late = epi_list(tm - 1) if tm >= 1 else []
            run_block(mf, early, late)
        if opt.stamp:
            e("s_memtime s[88:89]")
            nstamp[0] = 20
            stamp()
            e("s_mov_b32 s87, s88")
        for k in range(4): est(2, k)
        e("s_nop 7")
        for f in epi_list(3): f()
        for k in range(4): est(3, k)
    if opt.stamp:
        stamp()
        e("s_waitcnt vmcnt(0)")
        stamp()
        stamp_store(e, 26, 62)
    e("s_endpgm")

    S.reset()
    S.lab("L_producer")
    nstamp[0] = 0
    e("s_sub_u32 s21, s18, 4")
    if opt.pprio: e(f"s_setprio {opt.pprio}")
    e("v_lshrrev_b32 v9, 5, v7")
    e("v_and_b32 v11, 31, v7")
    e("s_lshl_b32 s22, s21, 1")
    e("v_add_u32 v9, s22, v9")
    e("v_mul_u32_u24 v2, 114688, v9")
    e("v_lshl_add_u32 v2, v11, 4, v2")
    for j in range(1, 8):
        e(f"s_mov_b32 s{43+j}, {j*14336}")
    e("s_mov_b32 s30, 903680")
    e("s_mov_b32 s31, 0x20000")
    e("s_lshl_b32 s22, s20, 9")
    e("s_waitcnt lgkmcnt(0)")
    e("s_mov_b32 s14, 0")
    e("s_mov_b32 s15, 0")
    e("s_add_u32 s8, s6, s22")
    e("s_addc_u32 s9, s7, 0")
    e("s_and_b32 s9, s9, 0xffff")
    def set_k(which):
        cnt = "s14" if which == "q" else "s15"
        e(f"s_add_u32 s12, s93, {cnt}")
        e(f"s_and_b32 s12, s12, {RM}")
        if RM != 15:
            e(f"s_and_b32 s13, {cnt}, {15 - RM}")
            e("s_or_b32 s12, s12, s13")
        if opt.noadv: e("s_mov_b32 s12, 0")
        if which == "q":
            e("s_mul_i32 s12, s12, 917504")
            e("s_add_u32 s28, s8, s12")
            e("s_addc_u32 s29, s9, 0")
        else:
            e("s_lshl_b32 s12, s12, 7")
            e("s_add_u32 s24, s10, s12")
            e("s_addc_u32 s25, s11, 0")
        e(f"s_add_u32 {cnt}, {cnt}, 1")
    def qb(b): return 256 - 32 * NQ + 32 * b
    def issue_x(u, j):
        if j == 0:
            e("s_add_u32 m0, s23, s33")
            set_k("x")
        if j == 4:
            e("s_add_u32 m0, m0, 0x1000")
            e(f"s_add_u32 s33, s33, 0x8000")
            e(f"s_cmp_eq_u32 s33, {NX*32768}")
            e("s_cselect_b32 s33, 0, s33")
        so = "0" if j == 0 else f"s{50+j}"
        if not opt.nox:
            off = (j & 3) * 1024
            e(f"buffer_load_dwordx4 v{80+(j&3)}, s[24:27], {so} offen offset:{off}{opt.xmod} lds")
            S.issue("vm", ("X", u))
    def issue_q(u, j):
        b = u % NQ
        if j == 0: set_k("q")
        r = qb(b) + 4 * j
        so = "0" if j == 0 else f"s{43+j}"
        if not opt.noq:
            e(f"buffer_load_dwordx4 v[{r}:{r+3}], v2, s[28:31], {so} offen{opt.qmod}")
            S.issue("vm", ("Q", u))
    for j in range(8): issue_q(0, j)
    if opt.stamp:
        e("s_mov_b32 s62, s60")
        nstamp[0] = 1
    e("v_and_b32 v12, 3, v11")
    e("v_bfe_u32 v13, v11, 2, 1")
    e("v_lshrrev_b32 v14, 3, v11")
    e("v_lshlrev_b32 v14, 5, v14")
    e("v_lshl_add_u32 v14, v12, 3, v14")
    e("v_lshl_add_u32 v14, v13, 2, v14")
    e("v_lshl_or_b32 v12, v13, 2, v12")
    e("v_xor_b32 v12, v12, v9")
    e("v_lshlrev_b32 v12, 4, v12")
    e("v_lshl_add_u32 v5, v14, 7, v12")
    e(f"v_add_u32 v5, {WRING}, v5")
    e("v_xor_b32 v6, 64, v5")
    e("v_lshlrev_b32 v3, 4, v11")
    e(f"v_add_u32 v3, {STAB}, v3")
    e("v_lshlrev_b32 v4, 5, v9")
    e(f"v_add_u32 v4, {ATAB}, v4")
    e("s_mov_b32 s92, 0")
    nx0 = 0
    nq0 = 1
    for g in opt.pre.split(","):
        if g == "q":
            for j in range(8): issue_q(nq0, j)
            nq0 += 1
    stamp()
    e("s_barrier")
    for g in opt.pro.split(","):
        if g == "q":
            for j in range(8): issue_q(nq0, j)
            nq0 += 1
    TB = [16, 32]
    def tab_read(u):
        r = TB[u & 1]
        e(f"ds_read_b128 v[{r}:{r+3}], v3");                S.issue("lgkm", ("T", u))
        e(f"ds_read_b128 v[{r+4}:{r+7}], v3 offset:8192");  S.issue("lgkm", ("T", u))
        e(f"ds_read_b128 v[{r+8}:{r+11}], v4");             S.issue("lgkm", ("T", u))
        e(f"ds_read_b128 v[{r+12}:{r+15}], v4 offset:16");  S.issue("lgkm", ("T", u))
        e("v_add_u32 v3, 512, v3")
        e("v_add_u32 v4, 256, v4")
    TT = [48, 56]
    DD = [64, 68, 72, 76]
    tab_read(0)
    S.c("ALIGN_ON") if opt.align else None
    ramp = [int(v) for v in opt.ramp.split(",")]
    NH = len(ramp)
    depth = nq0 + sum(ramp) - NH
    NLOOP = NT - depth
    assert (NLOOP - NH) % 4 == 0 and depth <= NQ - 1, (NLOOP, NH, depth)
    nextq = nq0
    for t in range(-1, NT - 1):
        u = t + 1
        b = u % NQ
        tail = u >= NLOOP
        head = u < NH
        S.emit = head or (u < NH + 4) or tail
        if u == NH:
            S.d(".p2align 6")
            S.lab("L_ploop")
        site = ("tail", u) if tail else (("head", u) if head else b)
        S.c(f"producer iteration u%4={b}" + (" (tail)" if tail else " (head)" if head else ""))
        ng = ramp[u] if head else (0 if tail else 1)
        qlist = list(range(nextq, nextq + ng)); nextq += ng
        tb = TB[u & 1]
        vm = [("q", qq, j) for qq in qlist for j in range(8)]
        def do_vm(n):
            for _ in range(n):
                if vm:
                    k, uu, j = vm.pop(0)
                    (issue_x if k == "x" else issue_q)(uu, j)
        if opt.stamp >= 2: e("s_memtime s[60:61]")
        do_vm(opt.burst)
        if u + 1 < NT: tab_read(u + 1)
        S.wait("lgkm", ("T", site), {("T", u)})
        S.wait("vm", ("Q", site), {("Q", u)})
        par = (u & 1) * 16384
        total = len(vm)
        slot = [0]; issued = [0]
        nsl = opt.nsl
        def slot_vm():
            slot[0] += 1
            k = slot[0] - opt.qs0
            target = 0 if k <= 0 else min(total, (total * k + nsl - 1) // nsl)
            n = target - issued[0]
            if n > 0:
                do_vm(n); issued[0] += n
        def wr(c):
            if opt.nodq or opt.nowr: return
            a = "v5" if c < 2 else "v6"
            e(f"ds_write_b128 {a}, v[{DD[c]}:{DD[c]+3}] offset:{par + c*128}")
            S.issue("lgkm", ("W", u))
        for c in range(4):
            T = TT[c & 1]
            if not opt.nodq:
                for j in range(8):
                    q = qb(b) + 4 * j + c
                    e(f"v_fma_mix_f32 v{T+j}, v{q}, v{tb+c}, v{tb+4+c} op_sel_hi:[1,0,0]")
                    if j == 3: slot_vm()
            else:
                slot_vm()
            slot_vm()
            if opt.wrpos == 1:
                if c == 2: wr(0)
                if c == 3: wr(2)
            if not opt.nodq:
                for j in range(8):
                    e(f"v_mul_f32_e64 v{T+j}, v{T+j}, v{tb+8+j}")
            slot_vm()
            if opt.wrpos == 1 and c == 2: wr(1)
            if not opt.nodq:
                for i in range(4):
                    e(f"v_cvt_pk_bf16_f32 v{DD[c]+i}, v{T+2*i}, v{T+2*i+1}")
            if opt.wrpos == 0: wr(c)
            if opt.wrpos == 1 and c == 3: wr(3)
            if opt.wrpos == 2 and c == 3:
                for cc in range(4): wr(cc)
            slot_vm()
        do_vm(99)
        S.wait("lgkm", ("W", site), {("W", u)})
        if opt.stamp >= 2:
            e("s_waitcnt lgkmcnt(0)")
            e("s_mov_b32 m0, s92"); e("s_nop 0"); e("v_writelane_b32 v100, s60, m0")
            e("s_add_u32 s92, s92, 1")
        e("s_barrier")
        if not tail and not head and (u - NH) % 4 == 3:
            e(f"s_cmp_lt_u32 s14, {NT}")
            e("s_cbranch_scc1 L_ploop")
    S.emit = True
    S.c("ALIGN_OFF")
    if opt.stamp:
        if opt.stamp >= 2:
            e("s_memtime s[60:61]")
            e("s_waitcnt lgkmcnt(0)")
            e("s_mov_b32 m0, s92"); e("s_nop 0"); e("v_writelane_b32 v100, s60, m0")
            e("s_lshl_b32 s56, s2, 11")
            e("s_lshl_b32 s57, s18, 8")
            e("s_add_u32 s56, s56, s57")
            e("s_add_u32 s56, s56, 128")
            e("s_add_u32 s56, s58, s56")
            e("s_addc_u32 s57, s59, 0")
            e("v_lshlrev_b32 v101, 2, v7")
            e("v_cmp_gt_u32 vcc, 32, v7")
            e("s_and_saveexec_b64 s[44:45], vcc")
            e("global_store_dword v101, v100, s[56:57]")
            e("s_mov_b64 exec, s[44:45]")
        stamp()
        stamp_store(e, 8, 62)
    S.lab("L_end")
    e("s_endpgm")
    if NPF:
        S.lab("L_prefetch")
        if opt.pf == 2:
            e("s_load_dwordx2 s[4:5], s[0:1], 0")
            e("v_lshrrev_b32 v1, 6, v0")
            e("v_and_b32 v7, 63, v0")
            e("s_and_b32 s16, s2, 7")
            e("v_readfirstlane_b32 s18, v1")
            e(f"s_sub_u32 s17, s2, {0 if opt.pffirst else NWG}")
            e("s_lshr_b32 s17, s17, 3")
            e("s_and_b32 s19, s16, 1")
            e("s_lshl_b32 s19, s19, 2")
            e("s_add_u32 s19, s19, s17")
            e(f"s_mul_i32 s93, s17, {opt.rm}")
            if opt.rx:
                e("s_and_b32 s21, s16, 1")
                e(f"s_mul_i32 s21, s21, {opt.rx}")
                e("s_add_u32 s93, s93, s21")
            e(f"s_and_b32 s93, s93, {RM}")
            e("s_and_b32 s20, s18, 3")
            e("s_lshr_b32 s21, s18, 2")
            e("s_lshl_b32 s20, s20, 6")
            e("v_add_u32 v2, s20, v7")
            e("v_lshlrev_b32 v2, 11, v2")
            e("s_lshl_b32 s22, s19, 19")
            e("s_mov_b32 s26, 522368")
            e("s_mov_b32 s27, 0x20000")
            e(f"s_add_u32 s6, s21, {opt.pf0}")
            e("s_waitcnt lgkmcnt(0)")
            e("s_add_u32 s4, s4, s22")
            e("s_addc_u32 s5, s5, 0")
            e("s_and_b32 s5, s5, 0xffff")
            S.lab("L_pfx")
            e("s_add_u32 s12, s93, s6")
            e(f"s_and_b32 s12, s12, {RM}")
            e(f"s_and_b32 s13, s6, {15 - RM}")
            e("s_or_b32 s12, s12, s13")
            e("s_lshl_b32 s12, s12, 7")
            e("s_add_u32 s24, s4, s12")
            e("s_addc_u32 s25, s5, 0")
            e("buffer_load_dword v8, v2, s[24:27], 0 offen")
            e("s_add_u32 s6, s6, 2")
            e(f"s_cmp_lt_u32 s6, {NT}")
            e("s_cbranch_scc1 L_pfx")
            e("s_endpgm")
        if opt.pf == 1:
            e("s_load_dwordx2 s[6:7], s[0:1], 8")
            e("v_lshrrev_b32 v1, 6, v0")
            e("v_and_b32 v7, 63, v0")
            e("s_and_b32 s16, s2, 7")
            e("v_readfirstlane_b32 s18, v1")
            e(f"s_sub_u32 s17, s2, {0 if opt.pffirst else NWG}")
            e("s_lshr_b32 s17, s17, 3")
            e("s_cmp_ge_u32 s18, 7")
            e("s_cbranch_scc1 L_end")
            e("s_lshr_b32 s20, s16, 1")
            e("s_mul_i32 s20, s20, 7")
            e("s_add_u32 s20, s20, s18")
            e(f"s_mul_i32 s21, s17, {opt.rm}")
            e(f"s_mul_i32 s22, s18, {opt.rn}")
            e("s_add_u32 s21, s21, s22")
            e("s_add_u32 s21, s21, 1")
            e(f"s_and_b32 s21, s21, {RM}")
            e("v_mul_u32_u24 v2, 14336, v7")
            e("s_lshl_b32 s22, s20, 9")
            e("s_mov_b32 s30, 903680")
            e("s_mov_b32 s31, 0x20000")
            e("s_waitcnt lgkmcnt(0)")
            e("s_add_u32 s8, s6, s22")
            e("s_addc_u32 s9, s7, 0")
            e("s_and_b32 s9, s9, 0xffff")
            phases = []
            if opt.pfa: phases.append(("A", 0))
            phases.append(("B", 8))
            for name, add in phases:
                if name == "A":
                    e(f"s_cmp_ge_u32 s18, {opt.pfa}")
                    e("s_cbranch_scc1 L_pfB")
                else:
                    S.lab("L_pfB")
                e(f"s_add_u32 s12, s21, {add}")
                e("s_mul_i32 s12, s12, 917504")
                e("s_add_u32 s28, s8, s12")
                e("s_addc_u32 s29, s9, 0")
                for i in range(4):
                    e(f"buffer_load_dword v{8+i}, v2, s[28:31], 0 offen offset:{i*128}")
            e("s_endpgm")


    if opt.cpf:
        S.lab("L_codeend")
        e("s_endpgm")
    hdr = HEADER + f"; @launch grid=({NWG + NPF},1,1) block=(512,1,1) lds={LDS}\n"
    pre = f""".amdgcn_target "amdgcn-amd-amdhsa--gfx950"
.text
.globl {KNAME}
.p2align 8
.type {KNAME},@function
{KNAME}:
"""
    post = f""".section .rodata,"a"
.p2align 6
.amdhsa_kernel {KNAME}
  .amdhsa_next_free_vgpr 256
  .amdhsa_next_free_sgpr 96
  .amdhsa_accum_offset 256
  .amdhsa_group_segment_fixed_size 0
  .amdhsa_kernarg_size 64
  .amdhsa_user_sgpr_count 2
  .amdhsa_user_sgpr_kernarg_segment_ptr 1
  .amdhsa_system_sgpr_workgroup_id_x 1
.end_amdhsa_kernel
"""
    return hdr + pre + "\n".join(S.resolve()) + "\n" + post

def parse(argv=None):
    ap = argparse.ArgumentParser()
    ap.add_argument("-o", default="k.s")
    ap.add_argument("--stamp", type=int, default=0)
    for f in ("nomfma", "nodq", "nox", "noq", "noc", "noadv", "nowr", "fake16"):
        ap.add_argument("--" + f, action="store_true")
    ap.add_argument("--xpos", default="6,7")
    ap.add_argument("--nsl", type=int, default=16)
    ap.add_argument("--qs0", type=int, default=0)
    ap.add_argument("--xph", default="0,1,2,3")
    ap.add_argument("--pf", type=int, default=0)
    ap.add_argument("--pfa", type=int, default=4)
    ap.add_argument("--epo", type=int, default=0)
    ap.add_argument("--pre", default="")
    ap.add_argument("--pf0", type=int, default=1)
    ap.add_argument("--pffirst", type=int, default=0)
    ap.add_argument("--rx", type=int, default=0)
    ap.add_argument("--cpf", type=int, default=0)
    ap.add_argument("--ramp", default="1,2")
    ap.add_argument("--pro", default="")
    ap.add_argument("--align", type=int, default=1)
    ap.add_argument("--cprio", type=int, default=3)
    ap.add_argument("--pprio", type=int, default=0)
    ap.add_argument("--rotn", type=int, default=8)
    ap.add_argument("--rm", type=int, default=2)
    ap.add_argument("--rn", type=int, default=1)
    ap.add_argument("--wrpos", type=int, default=0)
    ap.add_argument("--burst", type=int, default=0)
    ap.add_argument("--rpm", type=int, default=1)
    ap.add_argument("--stmod", default="nt")
    ap.add_argument("--qmod", default="")
    ap.add_argument("--xmod", default="")
    opt = ap.parse_args(argv)
    for k in ("stmod", "qmod", "xmod"):
        v = getattr(opt, k)
        if v: setattr(opt, k, " " + v)
    return opt

if __name__ == "__main__":
    opt = parse()
    open(opt.o, "w").write(gen(opt))
```

```python
import sys, argparse, re

KNAME = "standalone__weight_only_int_omniquant__prompt_kernel"
HEADER = """; Kernarg layout for this problem (64 bytes, ptrs only, base s[0:1]):
;
;   waves 0-3 (consumers): 128x64 of the tile each, v_mfma_f32_32x32x16_bf16 (D = W^T x^T), fragments from LDS;
;   waves 4-7 (producers): qw rows -> VGPR, W = bf16((float(q)*s - z*s)*act), ds_write into a 2-stage W ring
; Scales/zeros/act are expanded to f32 tables in LDS once.  One s_barrier per 64-deep K step.
"""
NT = 16

def isize(line):
    s = line.strip()
    if not s or s.startswith(";") or s.endswith(":") or s.startswith("."): return 0
    s = s.split(";")[0].strip()
    op = s.split()[0]
    args = s[len(op):]
    def has_lit():
        for tok in re.split(r"[,\s]+", args):
            tok = tok.strip()
            if not tok: continue
            if re.fullmatch(r"-?(0x[0-9a-fA-F]+|\d+)", tok):
                v = int(tok, 0)
                if v < -16 or v > 64: return True
            elif re.fullmatch(r"L_\w+-\w+", tok): return True
        return False
    if op.startswith(("ds_", "buffer_", "global_", "flat_", "s_load", "s_memtime", "s_memrealtime", "v_mfma", "v_pk_", "v_fma_mix")): return 8
    if op in ("s_waitcnt", "s_barrier", "s_nop", "s_endpgm", "s_setprio", "s_branch", "s_sleep") or op.startswith("s_cbranch"): return 4
    if op.startswith("s_"):
        if op in ("s_movk_i32", "s_addk_i32", "s_mulk_i32"): return 4
        return 8 if has_lit() else 4
    if op.startswith("v_"):
        vop3 = ("v_fma_f32", "v_cvt_pk_bf16_f32", "v_lshl_add_u32", "v_lshl_or_b32", "v_mul_lo_u32", "v_bfe_u32", "v_add3_u32", "v_perm_b32", "v_and_or_b32", "v_readlane_b32", "v_writelane_b32", "v_cmp_gt_u32")
        if op in vop3 or op.endswith("_e64"): return 8
        return 8 if has_lit() else 4
    raise ValueError(line)

class Stream:
    def __init__(self):
        self.L = []
        self.sites = {}
        self.emit = True
        self.maxn = {"vm": 63, "lgkm": 15}
        self.reset()
    def reset(self):
        self.q = {"vm": [], "lgkm": []}
    def e(self, s):
        if self.emit: self.L.append("    " + s)
    def lab(self, s):
        if self.emit: self.L.append(s + ":")
    def c(self, s):
        if self.emit: self.L.append("    ; " + s)
    def d(self, s):
        if self.emit: self.L.append(s)
    def issue(self, ctr, tag): self.q[ctr].append(tag)
    def wait(self, ctr, site, tags):
        q = self.q[ctr]
        last = -1
        for i, t in enumerate(q):
            if t in tags: last = i
        n = self.maxn[ctr] if last < 0 else min(len(q) - 1 - last, self.maxn[ctr])
        key = (ctr, site)
        self.sites[key] = min(self.sites.get(key, 99), n)
        if self.emit: self.L.append(("wait", key))
    def waitall(self, ctr):
        self.q[ctr] = []
        self.e(f"s_waitcnt {'vmcnt' if ctr=='vm' else 'lgkmcnt'}(0)")
    def resolve(self, align_regions=True):
        out = []
        for s in self.L:
            if isinstance(s, tuple):
                ctr, site = s[1]
                n = self.sites[s[1]]
                if n >= self.maxn[ctr]: continue
                out.append(f"    s_waitcnt {'vmcnt' if ctr=='vm' else 'lgkmcnt'}({n})")
            else:
                out.append(s)
        res = []
        off = 0
        on = False
        for s in out:
            t = s.strip()
            if t == "; ALIGN_ON": on = True
            if t == "; ALIGN_OFF": on = False
            if t.startswith(".p2align"):
                a = 1 << int(t.split()[1].rstrip(","))
                off = (off + a - 1) // a * a
                res.append(s); continue
            sz = isize(s)
            if on and sz == 8 and off % 8 == 4:
                res.append("    s_nop 0"); off += 4
            res.append(s); off += sz
        return res

def stamp_store(e, nst, first):
    e("s_waitcnt lgkmcnt(0)")
    e("s_lshl_b32 s56, s2, 11")
    e("s_lshl_b32 s57, s18, 8")
    e("s_add_u32 s56, s56, s57")
    e("s_add_u32 s58, s58, s56")
    e("s_addc_u32 s59, s59, 0")
    e("s_mov_b64 exec, 1")
    e("v_mov_b32 v24, 0")
    for i in range(nst):
        e(f"v_mov_b32 v16, s{first+i}")
        e(f"global_store_dword v24, v16, s[58:59] offset:{4*i}")

def gen(opt):
    NWG = 224
    NX = 3
    NQ = 4
    XRING = 0
    WRING = NX * 32768
    STAB = WRING + 32768
    ZTAB = STAB + 8192
    ATAB = ZTAB + 8192
    LDS = ATAB + 4096 + 512
    EPI = 32768
    S = Stream()
    e = S.e
    nstamp = [0]
    def stamp():
        if not opt.stamp: return
        e("s_memrealtime s[60:61]")
        e("s_waitcnt lgkmcnt(0)")
        e(f"s_mov_b32 s{62+nstamp[0]}, s60")
        nstamp[0] += 1
    RM = opt.rotn - 1
    NPF = 32 if opt.pf else 0
    e(f"s_cmp_ge_u32 s2, {NWG + NPF}")
    e("s_cbranch_scc1 L_end")
    if NPF and opt.pffirst:
        e(f"s_cmp_lt_u32 s2, {NPF}")
        e("s_cbranch_scc1 L_prefetch")
        e(f"s_sub_u32 s2, s2, {NPF}")
    elif NPF:
        e(f"s_cmp_ge_u32 s2, {NWG}")
        e("s_cbranch_scc1 L_prefetch")
    if opt.stamp:
        e("s_memrealtime s[60:61]")
    e("s_load_dwordx8 s[4:11], s[0:1], 0")
    e("s_load_dwordx4 s[12:15], s[0:1], 32")
    if opt.cpf:
        e("s_getpc_b64 s[44:45]")
        S.lab("L_pc")
        e("s_sub_u32 s44, s44, L_pc-" + KNAME)
        e("s_subb_u32 s45, s45, 0")
        e("v_lshlrev_b32 v30, 7, v0")
        e("v_min_u32 v30, L_codeend-" + KNAME + ", v30")
        e("global_load_dword v126, v30, s[44:45]")
    if opt.stamp:
        e("s_load_dwordx2 s[58:59], s[0:1], 56")
    e("v_lshrrev_b32 v1, 6, v0")
    e("s_and_b32 s16, s2, 7")
    e("s_lshr_b32 s17, s2, 3")
    e("v_readfirstlane_b32 s18, v1")
    e("s_and_b32 s19, s16, 1")
    e("s_lshl_b32 s19, s19, 2")
    e("s_and_b32 s20, s17, 3")
    e("s_lshr_b32 s21, s17, 2")
    e(f"s_mul_i32 s93, s20, {opt.rm}")
    e("s_add_u32 s19, s19, s20")
    e("s_lshr_b32 s20, s16, 1")
    e("s_mul_i32 s20, s20, 7")
    e("s_add_u32 s20, s20, s21")
    e(f"s_mul_i32 s21, s21, {opt.rn}")
    e("s_add_u32 s93, s93, s21")
    if opt.rx:
        e("s_and_b32 s21, s16, 1")
        e(f"s_mul_i32 s21, s21, {opt.rx}")
        e("s_add_u32 s93, s93, s21")
    e(f"s_and_b32 s93, s93, {RM}")
    e("v_and_b32 v7, 63, v0")
    e("s_cmp_ge_u32 s18, 4")
    e("s_cbranch_scc1 L_producer")

    S.c("consumer waves")
    e(f"s_setprio {opt.cprio}")
    e("v_lshrrev_b32 v12, 4, v0")
    e("v_and_b32 v13, 15, v0")
    e("v_mul_u32_u24 v14, 7168, v12")
    e("v_lshl_add_u32 v14, v13, 4, v14")
    e("v_lshlrev_b32 v15, 3, v0")
    e("s_lshl_b32 s23, s20, 8")
    e("s_sub_u32 s34, 114688, s23")
    e("s_mov_b32 s35, 0x20000")
    e("s_mov_b32 s38, s34")
    e("s_mov_b32 s39, 0x20000")
    e("s_mov_b32 s42, 2048")
    e("s_mov_b32 s43, 0x20000")
    e("s_waitcnt lgkmcnt(0)")
    e("s_add_u32 s32, s8, s23")
    e("s_addc_u32 s33, s9, 0")
    e("s_and_b32 s33, s33, 0xffff")
    e("s_add_u32 s36, s10, s23")
    e("s_addc_u32 s37, s11, 0")
    e("s_and_b32 s37, s37, 0xffff")
    e("s_mov_b32 s40, s12")
    e("s_and_b32 s41, s13, 0xffff")
    e("buffer_load_dwordx4 v[16:19], v14, s[32:35], 0 offen")
    e("buffer_load_dwordx4 v[20:23], v14, s[36:39], 0 offen")
    e("buffer_load_dwordx2 v[24:25], v15, s[40:43], 0 offen")
    e("v_lshrrev_b32 v8, 3, v7")
    e("s_lshl_b32 s23, s18, 6")
    e("v_add_u32 v8, s23, v8")
    e("v_lshrrev_b32 v9, 5, v7")
    e("v_lshrrev_b32 v10, 4, v7")
    e("v_xor_b32 v10, v9, v10")
    e("v_and_b32 v10, 1, v10")
    e("v_lshlrev_b32 v10, 2, v10")
    e("v_and_b32 v11, 7, v7")
    e("v_xor_b32 v10, v10, v11")
    e("v_lshlrev_b32 v10, 4, v10")
    e("v_lshl_add_u32 v112, v8, 11, v10")
    for jj in range(1, 4):
        e(f"v_xor_b32 v{112+jj}, {jj<<4}, v112")
    for j in range(1, 8):
        e(f"s_mov_b32 s{47+j}, {j*16384 - (j&3)*1024}")
    e("s_lshl_b32 s55, s18, 13")
    e("s_lshl_b32 s23, s19, 19")
    e("s_add_u32 s4, s4, s23")
    e("s_addc_u32 s5, s5, 0")
    e("s_and_b32 s5, s5, 0xffff")
    e("s_mov_b32 s10, 522368")
    e("s_mov_b32 s11, 0x20000")
    e("s_mov_b32 s6, 0")
    e("s_mov_b32 s7, 0")
    def cx_set():
        e("s_add_u32 m0, s55, s7")
        e("s_add_u32 s12, s93, s6")
        e(f"s_and_b32 s12, s12, {RM}")
        if RM != 15:
            e(f"s_and_b32 s13, s6, {15 - RM}")
            e("s_or_b32 s12, s12, s13")
        if opt.noadv: e("s_mov_b32 s12, 0")
        e("s_lshl_b32 s12, s12, 7")
        e("s_add_u32 s8, s4, s12")
        e("s_addc_u32 s9, s5, 0")
        e("s_add_u32 s6, s6, 1")
    def cx_issue(u, j):
        if j == 0: cx_set()
        if j == 4:
            e("s_add_u32 m0, m0, 0x1000")
            e("s_add_u32 s7, s7, 0x8000")
            e(f"s_cmp_eq_u32 s7, {NX*32768}")
            e("s_cselect_b32 s7, 0, s7")
        so = "0" if j == 0 else f"s{47+j}"
        if not opt.nox:
            e(f"buffer_load_dwordx4 v{112+(j&3)}, s[8:11], {so} offen offset:{(j&3)*1024}{opt.xmod} lds")
            S.issue("vm", ("X", u))
    for j in range(8): cx_issue(0, j)
    if opt.stamp:
        e("s_mov_b32 s62, s60")
        nstamp[0] = 1
    e("s_and_b32 s21, s18, 1")
    e("s_lshr_b32 s22, s18, 1")
    e("v_and_b32 v10, 31, v7")
    e("v_lshrrev_b32 v11, 5, v7")
    e("v_lshrrev_b32 v2, 3, v10")
    e("v_lshrrev_b32 v3, 2, v10")
    e("v_lshrrev_b32 v4, 1, v10")
    e("v_xor_b32 v3, v3, v4")
    e("v_and_b32 v3, 1, v3")
    e("v_lshl_or_b32 v2, v3, 2, v2")
    e("v_xor_b32 v2, v2, v11")
    e("v_lshlrev_b32 v2, 4, v2")
    e("v_lshl_add_u32 v9, v10, 7, v2")
    e("s_lshl_b32 s23, s21, 14")
    e("s_lshl_b32 s24, s22, 13")
    e(f"s_add_u32 s24, s24, {WRING}")
    XA = [2, 3, 4, 5]
    WA = [64, 65, 66, 67]
    for ks in range(4):
        e(f"v_xor_b32 v8, {ks*32}, v9")
        e(f"v_add_u32 v{XA[ks]}, s23, v8")
        e(f"v_add_u32 v{WA[ks]}, s24, v8")
    for r in range(128, 256):
        e(f"v_mov_b32 v{r}, 0")
    e("s_mov_b32 s31, 0xffff0000")
    e("s_mov_b32 s30, 0x4b800000")
    e("v_subrev_u32 v74, s93, v12")
    e(f"v_and_b32 v74, {RM}, v74")
    if RM != 15:
        e(f"v_and_b32 v75, {15 - RM}, v12")
        e("v_or_b32 v74, v74, v75")
    e("v_lshlrev_b32 v72, 9, v74")
    e("v_lshl_add_u32 v72, v13, 5, v72")
    e(f"v_add_u32 v72, {STAB}, v72")
    e("v_lshlrev_b32 v73, 8, v74")
    e("v_lshl_add_u32 v73, v13, 4, v73")
    e(f"v_add_u32 v73, {ATAB}, v73")
    e("s_waitcnt vmcnt(%d)" % (0 if opt.nox else 8))
    for d in range(4):
        e(f"v_lshlrev_b32 v{80+2*d}, 16, v{16+d}")
        e(f"v_and_b32 v{81+2*d}, s31, v{16+d}")
        e(f"v_lshlrev_b32 v{88+2*d}, 16, v{20+d}")
        e(f"v_and_b32 v{89+2*d}, s31, v{20+d}")
    for d in range(8):
        e(f"v_mul_f32_e64 v{88+d}, -v{88+d}, v{80+d}")
    if not opt.cvt:
        for d in range(8):
            e(f"v_mul_f32 v{80+d}, s30, v{80+d}")
    for d in range(2):
        e(f"v_lshlrev_b32 v{96+2*d}, 16, v{24+d}")
        e(f"v_and_b32 v{97+2*d}, s31, v{24+d}")
    e("ds_write_b128 v72, v[80:83]")
    e("ds_write_b128 v72, v[84:87] offset:16")
    e("ds_write_b128 v72, v[88:91] offset:8192")
    e("ds_write_b128 v72, v[92:95] offset:8208")
    e("ds_write_b128 v73, v[96:99]")
    e("s_lshl_b32 s25, s19, 8")
    e("s_lshl_b32 s26, s21, 7")
    e("s_add_u32 s25, s25, s26")
    e("s_mul_i32 s25, s25, 7168")
    e("s_lshl_b32 s26, s20, 8")
    e("s_lshl_b32 s27, s22, 7")
    e("s_add_u32 s26, s26, s27")
    e("s_add_u32 s25, s25, s26")
    e("s_add_u32 s40, s14, s25")
    e("s_addc_u32 s41, s15, 0")
    e("s_and_b32 s41, s41, 0xffff")
    e("s_sub_u32 s42, 14680064, s25")
    e("s_mov_b32 s43, 0x20000")
    e("v_and_b32 v12, 7, v10")
    e("v_lshlrev_b32 v13, 1, v11")
    e("v_xor_b32 v12, v12, v13")
    e("v_lshlrev_b32 v12, 4, v12")
    e("v_lshl_add_u32 v12, v10, 7, v12")
    e("s_lshl_b32 s26, s18, 14")
    e(f"s_add_u32 s26, s26, {EPI}")
    e("v_add_u32 v12, s26, v12")
    EW = [72, 73, 74, 75]
    e("s_waitcnt lgkmcnt(0)")
    for tn in range(2):
        for q in range(2):
            e(f"v_xor_b32 v{EW[tn*2+q]}, {(4*tn+q)<<4}, v12")
    e("v_lshrrev_b32 v13, 3, v7")
    e("v_and_b32 v14, 7, v7")
    e("v_xor_b32 v15, v14, v13")
    e("v_lshlrev_b32 v15, 4, v15")
    e("v_lshl_add_u32 v15, v13, 7, v15")
    e("v_add_u32 v76, s26, v15")
    e("v_mul_u32_u24 v77, 7168, v13")
    e("v_lshl_add_u32 v77, v14, 4, v77")
    e("s_mov_b32 s28, 0")
    e("s_mov_b32 s29, 0")
    e("s_mov_b32 s44, 0x8000")
    e("s_mov_b32 s45, 0xffff0000")
    e("s_barrier")
    stamp()
    for j in range(8): cx_issue(1, j)
    F = [dict(x=[16, 20, 24, 28], w=[32, 36]), dict(x=[40, 44, 48, 52], w=[56, 60])]
    def acc(tn, tm):
        b = 128 + (tn * 4 + tm) * 16
        return f"v[{b}:{b+15}]"
    def rd(buf, kind, idx, t, ks):
        if opt.noc: return
        if kind == "x":
            r = F[buf]["x"][idx]
            e(f"ds_read_b128 v[{r}:{r+3}], v{XA[ks]} offset:{idx*4096}")
        else:
            r = F[buf]["w"][idx]; off = idx * 4096 + (t & 1) * 16384
            e(f"ds_read_b128 v[{r}:{r+3}], v{WA[ks]} offset:{off}")
        S.issue("lgkm", (t, ks, kind, idx))
    order = [("w", 0), ("x", 0), ("x", 1), ("x", 2), ("x", 3), ("w", 1)]
    def phase(mf, rdspec, site, tm_major=False, after=None, xd=None):
        if tm_major: mfs = [(tn, tm) for tm in range(4) for tn in range(2)]
        else: mfs = [(tn, tm) for tn in range(2) for tm in range(4)]
        reads = list(order) if rdspec else []
        ri = 0
        for mi, (tn, tm) in enumerate(mfs):
            for _ in range(opt.rpm):
                if ri < len(reads):
                    kind, idx = reads[ri]; ri += 1
                    rd(rdspec[2], kind, idx, rdspec[0], rdspec[1])
            t, ks, buf = mf
            if mi <= 4: S.wait("lgkm", (site, mi), {(t, ks, "w", tn), (t, ks, "x", tm)})
            if not opt.nomfma:
                xr = F[buf]["x"][tm]; wr = F[buf]["w"][tn]
                if opt.fake16:
                    b0 = 128 + (tn * 4 + tm) * 16 + (ks & 1) * 8
                    xr2 = F[buf]["x"][(tm + 1) % 4]
                    e(f"v_mfma_f32_16x16x32_bf16 v[{b0}:{b0+3}], v[{wr}:{wr+3}], v[{xr}:{xr+3}], v[{b0}:{b0+3}]")
                    e(f"v_mfma_f32_16x16x32_bf16 v[{b0+4}:{b0+7}], v[{wr}:{wr+3}], v[{xr2}:{xr2+3}], v[{b0+4}:{b0+7}]")
                else:
                    e(f"v_mfma_f32_32x32x16_bf16 {acc(tn,tm)}, v[{wr}:{wr+3}], v[{xr}:{xr+3}], {acc(tn,tm)}")
            if after and mi == 6: after()
            if xd and mi in xd[1]:
                if xd[2]: cx_issue(xd[0], xd[2].pop(0))
    def advance_stage():
        e("s_cmp_eq_u32 s29, 2")
        e("s_cselect_b32 s46, s45, s44")
        e("s_cselect_b32 s47, -1, s29")
        e("s_add_u32 s29, s47, 1")
        for ks in range(4):
            e(f"v_add_u32 v{XA[ks]}, s46, v{XA[ks]}")
    e("s_waitcnt vmcnt(%d)" % (0 if opt.nox else 8))
    e("s_barrier")
    if opt.stamp:
        e("s_memtime s[88:89]")
        stamp()
        e("s_mov_b32 s86, s88")
    for kind, idx in order: rd(0, kind, idx, 0, 0)
    _q = list(S.q["vm"])
    n0 = len(opt.xpos.split(",")) if "0" in opt.xph.split(",") else 0
    for jj in range(n0): cx_issue(2, jj)
    S.q["vm"] = _q
    e("s_branch L_cB0")
    S.d(".p2align 6")
    S.lab("L_cloop")
    S.emit = True
    saveL = S.L
    body = {}
    xpos = [int(v) for v in opt.xpos.split(",")]
    for t in range(NT):
        par = t & 1
        tail = t >= NT - 2
        site0 = ("tail", par) if tail else par
        S.L = []
        S.emit = True
        js = list(range(8))
        xd = None if tail else (t + 2, xpos, js)
        xph = [int(v) for v in opt.xph.split(",")]
        def xdp(p): return xd if p in xph else None
        if opt.epo and t == NT - 1:
            body[t] = []
            continue
        if t > 0:
            S.wait("vm", ("X", site0), {("X", t)})
            S.waitall("lgkm")
            e("s_barrier")
            phase((t-1, 3, 1), (t, 0, 0), (site0, 0), xd=xdp(0))
        else:
            saveL_extra = []
        if par == 0 and not tail: S.lab("L_cB0")
        if t == 0:
            for _ in range(n0):
                js.pop(0); S.issue("vm", ("X", 2))
        phase((t, 0, 0), (t, 1, 1), (site0, 1), xd=xdp(1))
        phase((t, 1, 1), (t, 2, 0), (site0, 2), xd=xdp(2))
        phase((t, 2, 0), (t, 3, 1), (site0, 3), after=advance_stage, xd=xdp(3))
        if par == 1 and not tail:
            e("s_add_u32 s28, s28, 1")
            e(f"s_cmp_lt_u32 s28, {NT//2 - 1}")
            e("s_cbranch_scc1 L_cloop")
        if t in (2, 3, NT - 2, NT - 1): body[t] = S.L
    S.L = saveL + body[2] + body[3] + body[NT - 2] + body[NT - 1]
    if not opt.epo:
        S.waitall("lgkm")
        phase((NT-1, 3, 1), None, ("fin", 0), tm_major=True)
        if opt.stamp:
            e("s_memtime s[88:89]")
            nstamp[0] = 20
            stamp()
            e("s_mov_b32 s87, s88")
        S.c("epilogue")
        S.reset()
        T = 80
        R = 16
        e("s_mov_b32 s27, 0")
        sidx = [0]
        def store(it):
            rr = R + (it % 8) * 4
            S.wait("lgkm", ("st", it), {("R", it)})
            e(f"buffer_store_dwordx4 v[{rr}:{rr+3}], v77, s[40:43], s27 offen{opt.stmod}")
            e(f"s_add_u32 s27, s27, 57344")
        if opt.stamp: e("s_nop 7")
        for tm in range(4):
            for tn in range(2):
                b = 128 + (tn * 4 + tm) * 16
                tb = T + ((tm * 2 + tn) % 4) * 8
                if tm == 3 and tn == 0 and not opt.stamp: e("s_nop 3")
                for d in range(8):
                    e(f"v_cvt_pk_bf16_f32 v{tb+d}, v{b+2*d}, v{b+2*d+1}")
                for q in range(2):
                    e(f"ds_write_b128 v{EW[tn*2+q]}, v[{tb+4*q}:{tb+4*q+3}] offset:{tm*4096}")
                    S.issue("lgkm", ("EWr", tm))
                if tm > 0:
                    store((tm - 1) * 4 + tn * 2); store((tm - 1) * 4 + tn * 2 + 1)
            for k in range(4):
                it = tm * 4 + k
                r = R + (it % 8) * 4
                e(f"ds_read_b128 v[{r}:{r+3}], v76 offset:{it*1024}")
                S.issue("lgkm", ("R", it))
        for it in range(12, 16): store(it)
    else:
        S.c("last K step: accumulators finish row block by row block; the epilogue overlaps the MFMAs")
        t = NT - 1
        e("s_waitcnt vmcnt(0)")
        S.waitall("lgkm")
        S.reset()
        e("s_barrier")
        W15 = {(ks, tn): 96 + (ks * 2 + tn) * 4 for ks in range(4) for tn in range(2)}
        XB = [[16 + 4 * ks for ks in range(4)], [40 + 4 * ks for ks in range(4)]]
        SR = [32, 36, 56, 60]
        TC = [80, 88]
        def rw(ks, tn):
            r = W15[(ks, tn)]
            e(f"ds_read_b128 v[{r}:{r+3}], v{WA[ks]} offset:{tn*4096 + (t & 1)*16384}")
            S.issue("lgkm", ("w", ks, tn))
        def rx(tm, ks):
            r = XB[tm & 1][ks]
            e(f"ds_read_b128 v[{r}:{r+3}], v{XA[ks]} offset:{tm*4096}")
            S.issue("lgkm", ("x", tm, ks))
        def cvt(tm, tn, d):
            b_ = 128 + (tn * 4 + tm) * 16
            e(f"v_cvt_pk_bf16_f32 v{TC[tn]+d}, v{b_+2*d}, v{b_+2*d+1}")
        def ewr(tm, tn, q):
            e(f"ds_write_b128 v{EW[tn*2+q]}, v[{TC[tn]+4*q}:{TC[tn]+4*q+3}] offset:{tm*4096}")
            S.issue("lgkm", ("EWr", tm))
        def erd(tm, k):
            it = tm * 4 + k
            e(f"ds_read_b128 v[{SR[k]}:{SR[k]+3}], v76 offset:{it*1024}")
            S.issue("lgkm", ("R", it))
        def est(tm, k):
            it = tm * 4 + k
            S.wait("lgkm", ("st", it), {("R", it)})
            e(f"buffer_store_dwordx4 v[{SR[k]}:{SR[k]+3}], v77, s[40:43], s27 offen{opt.stmod}")
            e(f"s_add_u32 s27, s27, 57344")
        def epi_list(tm):
            fl = []
            for tn in range(2):
                for d in range(8): fl.append(lambda tn=tn, d=d: cvt(tm, tn, d))
                for q in range(2): fl.append(lambda tn=tn, q=q: ewr(tm, tn, q))
            for k in range(4): fl.append(lambda k=k: erd(tm, k))
            return fl
        def run_block(mfmas, early, late):
            n = len(mfmas)
            for i, mf in enumerate(mfmas):
                mf()
                rem = n - i
                k = -(-len(early) // max(1, min(rem, 2))) if i < 2 else len(early)
                for _ in range(min(k, len(early))): early.pop(0)()
                if i >= 2:
                    k = -(-len(late) // rem)
                    for _ in range(min(k, len(late))): late.pop(0)()
            for f in early + late: f()
        e("s_mov_b32 s27, 0")
        mf = []
        for tn in range(2):
            for tm in range(4):
                xr = F[1]["x"][tm]; wr = F[1]["w"][tn]
                mf.append(lambda tn=tn, tm=tm, xr=xr, wr=wr: e(f"v_mfma_f32_32x32x16_bf16 {acc(tn,tm)}, v[{wr}:{wr+3}], v[{xr}:{xr+3}], {acc(tn,tm)}"))
        rds = []
        for ks in range(4):
            rds += [lambda ks=ks: rw(ks, 0), lambda ks=ks: rx(0, ks), lambda ks=ks: rw(ks, 1)]
        for i, m_ in enumerate(mf):
            m_()
            for _ in range(2 if i < 4 else 1):
                if rds: rds.pop(0)()
        for f in rds: f()
        for tm in range(4):
            mf = []
            for ks in range(4):
                for tn in range(2):
                    def m_(ks=ks, tn=tn, tm=tm):
                        S.wait("lgkm", ("ep", tm, ks, tn), {("w", ks, tn), ("x", tm, ks)})
                        xr = XB[tm & 1][ks]; wr = W15[(ks, tn)]
                        e(f"v_mfma_f32_32x32x16_bf16 {acc(tn,tm)}, v[{wr}:{wr+3}], v[{xr}:{xr+3}], {acc(tn,tm)}")
                    mf.append(m_)
            early = []
            if tm + 1 < 4: early += [lambda ks=ks: rx(tm + 1, ks) for ks in range(4)]
            if tm >= 2: early += [lambda k=k: est(tm - 2, k) for k in range(4)]
            late = epi_list(tm - 1) if tm >= 1 else []
            run_block(mf, early, late)
        if opt.stamp:
            e("s_memtime s[88:89]")
            nstamp[0] = 20
            stamp()
            e("s_mov_b32 s87, s88")
        for k in range(4): est(2, k)
        e("s_nop 7")
        for f in epi_list(3): f()
        for k in range(4): est(3, k)
    if opt.stamp:
        stamp()
        e("s_waitcnt vmcnt(0)")
        stamp()
        stamp_store(e, 26, 62)
    e("s_endpgm")

    S.reset()
    S.lab("L_producer")
    nstamp[0] = 0
    e("s_sub_u32 s21, s18, 4")
    if opt.pprio: e(f"s_setprio {opt.pprio}")
    e("v_lshrrev_b32 v9, 5, v7")
    e("v_and_b32 v11, 31, v7")
    e("s_lshl_b32 s22, s21, 1")
    e("v_add_u32 v9, s22, v9")
    e("v_mul_u32_u24 v2, 114688, v9")
    e("v_lshl_add_u32 v2, v11, 4, v2")
    for j in range(1, 8):
        e(f"s_mov_b32 s{43+j}, {j*14336}")
    e("s_mov_b32 s30, 903680")
    e("s_mov_b32 s31, 0x20000")
    e("s_lshl_b32 s22, s20, 9")
    e("s_waitcnt lgkmcnt(0)")
    e("s_mov_b32 s14, 0")
    e("s_mov_b32 s15, 0")
    e("s_add_u32 s8, s6, s22")
    e("s_addc_u32 s9, s7, 0")
    e("s_and_b32 s9, s9, 0xffff")
    def set_k(which):
        cnt = "s14" if which == "q" else "s15"
        e(f"s_add_u32 s12, s93, {cnt}")
        e(f"s_and_b32 s12, s12, {RM}")
        if RM != 15:
            e(f"s_and_b32 s13, {cnt}, {15 - RM}")
            e("s_or_b32 s12, s12, s13")
        if opt.noadv: e("s_mov_b32 s12, 0")
        if which == "q":
            e("s_mul_i32 s12, s12, 917504")
            e("s_add_u32 s28, s8, s12")
            e("s_addc_u32 s29, s9, 0")
        else:
            e("s_lshl_b32 s12, s12, 7")
            e("s_add_u32 s24, s10, s12")
            e("s_addc_u32 s25, s11, 0")
        e(f"s_add_u32 {cnt}, {cnt}, 1")
    def qb(b): return 256 - 32 * NQ + 32 * b
    def issue_x(u, j):
        if j == 0:
            e("s_add_u32 m0, s23, s33")
            set_k("x")
        if j == 4:
            e("s_add_u32 m0, m0, 0x1000")
            e(f"s_add_u32 s33, s33, 0x8000")
            e(f"s_cmp_eq_u32 s33, {NX*32768}")
            e("s_cselect_b32 s33, 0, s33")
        so = "0" if j == 0 else f"s{50+j}"
        if not opt.nox:
            off = (j & 3) * 1024
            e(f"buffer_load_dwordx4 v{80+(j&3)}, s[24:27], {so} offen offset:{off}{opt.xmod} lds")
            S.issue("vm", ("X", u))
    ktab = [False]
    def issue_q(u, j):
        b = u % NQ
        if j == 0:
            if ktab[0]:
                e("s_movrels_b32 s12, s72")
                e(f"s_add_u32 s14, s14, 1")
                e("s_add_u32 s28, s8, s12")
                e("s_addc_u32 s29, s9, 0")
                e("s_mov_b32 m0, s14")
            else:
                set_k("q")
        r = qb(b) + 4 * j
        so = "0" if j == 0 else f"s{43+j}"
        if not opt.noq:
            e(f"buffer_load_dwordx4 v[{r}:{r+3}], v2, s[28:31], {so} offen{opt.qmod}")
            S.issue("vm", ("Q", u))
    for j in range(8): issue_q(0, j)
    if opt.stamp:
        e("s_mov_b32 s62, s60")
        nstamp[0] = 1
    if opt.ktab:
        for u_ in range(NT):
            e(f"s_add_u32 s12, s93, {u_ & RM}")
            e(f"s_and_b32 s12, s12, {RM}")
            if u_ & ~RM: e(f"s_or_b32 s12, s12, {u_ & ~RM}")
            if opt.noadv: e("s_mov_b32 s12, 0")
            e(f"s_mul_i32 s{72+u_}, s12, 917504")
        e("s_mov_b32 s88, 0")
        e("s_mov_b32 m0, s14")
        ktab[0] = True
    e("v_and_b32 v12, 3, v11")
    e("v_bfe_u32 v13, v11, 2, 1")
    e("v_lshrrev_b32 v14, 3, v11")
    e("v_lshlrev_b32 v14, 5, v14")
    e("v_lshl_add_u32 v14, v12, 3, v14")
    e("v_lshl_add_u32 v14, v13, 2, v14")
    e("v_lshl_or_b32 v12, v13, 2, v12")
    e("v_xor_b32 v12, v12, v9")
    e("v_lshlrev_b32 v12, 4, v12")
    e("v_lshl_add_u32 v5, v14, 7, v12")
    e(f"v_add_u32 v5, {WRING}, v5")
    e("v_xor_b32 v6, 64, v5")
    e("v_lshlrev_b32 v3, 4, v11")
    e(f"v_add_u32 v3, {STAB}, v3")
    e("v_lshlrev_b32 v4, 5, v9")
    e(f"v_add_u32 v4, {ATAB}, v4")
    e("s_mov_b32 s92, 0")
    nx0 = 0
    nq0 = 1
    for g in opt.pre.split(","):
        if g == "q":
            for j in range(8): issue_q(nq0, j)
            nq0 += 1
    stamp()
    e("s_barrier")
    for g in opt.pro.split(","):
        if g == "q":
            for j in range(8): issue_q(nq0, j)
            nq0 += 1
    TB = [16, 32]
    tabk = [0]
    def tab_read(u, adv=None):
        r = TB[u & 1]
        k = tabk[0]
        e(f"ds_read_b128 v[{r}:{r+3}], v3 offset:{k*512}");                S.issue("lgkm", ("T", u))
        e(f"ds_read_b128 v[{r+4}:{r+7}], v3 offset:{8192+k*512}");  S.issue("lgkm", ("T", u))
        e(f"ds_read_b128 v[{r+8}:{r+11}], v4 offset:{k*256}");             S.issue("lgkm", ("T", u))
        e(f"ds_read_b128 v[{r+12}:{r+15}], v4 offset:{k*256+16}");  S.issue("lgkm", ("T", u))
        tabk[0] += 1
        if adv:
            e(f"v_add_u32 v3, {tabk[0]*512}, v3")
            e(f"v_add_u32 v4, {tabk[0]*256}, v4")
            tabk[0] = 0
    TT = [48, 56]
    DD = [64, 68, 72, 76]
    tab_read(0)
    S.c("ALIGN_ON") if opt.align else None
    ramp = [int(v) for v in opt.ramp.split(",")]
    NH = len(ramp)
    depth = nq0 + sum(ramp) - NH
    NLOOP = NT - depth
    assert (NLOOP - NH) % 4 == 0 and depth <= NQ - 1, (NLOOP, NH, depth)
    nextq = nq0
    for t in range(-1, NT - 1):
        u = t + 1
        b = u % NQ
        tail = u >= NLOOP
        head = u < NH
        S.emit = head or (u < NH + 4) or tail
        if u == NH:
            S.d(".p2align 6")
            S.lab("L_ploop")
        site = ("tail", u) if tail else (("head", u) if head else b)
        S.c(f"producer iteration u%4={b}" + (" (tail)" if tail else " (head)" if head else ""))
        ng = ramp[u] if head else (0 if tail else 1)
        qlist = list(range(nextq, nextq + ng)); nextq += ng
        tb = TB[u & 1]
        vm = [("q", qq, j) for qq in qlist for j in range(8)]
        def do_vm(n):
            for _ in range(n):
                if vm:
                    k, uu, j = vm.pop(0)
                    (issue_x if k == "x" else issue_q)(uu, j)
        if opt.stamp >= 2: e("s_memtime s[60:61]")
        do_vm(opt.burst)
        if u + 1 < NT:
            adv = (u == NH - 1) or (not head and not tail and (u - NH) % 4 == 3)
            tab_read(u + 1, adv)
        if u == 0: S.wait("lgkm", ("T", site), {("T", u)})
        S.wait("vm", ("Q", site), {("Q", u)})
        par = (u & 1) * 16384
        total = len(vm)
        slot = [0]; issued = [0]
        nsl = opt.nsl
        def slot_vm():
            slot[0] += 1
            k = slot[0] - opt.qs0
            target = 0 if k <= 0 else min(total, (total * k + nsl - 1) // nsl)
            n = target - issued[0]
            if n > 0:
                do_vm(n); issued[0] += n
        def wr(c):
            if opt.nodq or opt.nowr: return
            a = "v5" if c < 2 else "v6"
            e(f"ds_write_b128 {a}, v[{DD[c]}:{DD[c]+3}] offset:{par + c*128}")
            S.issue("lgkm", ("W", u))
        for c in range(4):
            T = TT[c & 1]
            if not opt.nodq:
                for j in range(8):
                    q = qb(b) + 4 * j + c
                    if opt.cvt:
                        e(f"v_cvt_f32_i32_e64 v{T+j}, v{q}")
                    else:
                        e(f"v_fma_mix_f32 v{T+j}, v{q}, v{tb+c}, v{tb+4+c} op_sel_hi:[1,0,0]")
                    if j == 3: slot_vm()
                if opt.cvt:
                    for j in range(8):
                        e(f"v_fma_f32 v{T+j}, v{T+j}, v{tb+c}, v{tb+4+c}")
            else:
                slot_vm()
            slot_vm()
            if opt.wrpos == 1:
                if c == 2: wr(0)
                if c == 3: wr(2)
            if not opt.nodq:
                for j in range(8):
                    e(f"v_mul_f32_e64 v{T+j}, v{T+j}, v{tb+8+j}")
            slot_vm()
            if opt.wrpos == 1 and c == 2: wr(1)
            if not opt.nodq:
                for i in range(4):
                    e(f"v_cvt_pk_bf16_f32 v{DD[c]+i}, v{T+2*i}, v{T+2*i+1}")
            if opt.wrpos == 0: wr(c)
            if opt.wrpos == 1 and c == 3: wr(3)
            if opt.wrpos == 2 and c == 3:
                for cc in range(4): wr(cc)
            slot_vm()
        do_vm(99)
        S.wait("lgkm", ("W", site), {("W", u)})
        if opt.stamp >= 2:
            e("s_waitcnt lgkmcnt(0)")
            e("s_mov_b32 m0, s92"); e("s_nop 0"); e("v_writelane_b32 v100, s60, m0")
            e("s_add_u32 s92, s92, 1")
            e("s_mov_b32 m0, s14")
        e("s_barrier")
        if not tail and not head and (u - NH) % 4 == 3:
            e(f"s_cmp_lt_u32 s14, {NT}")
            e("s_cbranch_scc1 L_ploop")
    S.emit = True
    S.c("ALIGN_OFF")
    if opt.stamp:
        if opt.stamp >= 2:
            e("s_memtime s[60:61]")
            e("s_waitcnt lgkmcnt(0)")
            e("s_mov_b32 m0, s92"); e("s_nop 0"); e("v_writelane_b32 v100, s60, m0")
            e("s_lshl_b32 s56, s2, 11")
            e("s_lshl_b32 s57, s18, 8")
            e("s_add_u32 s56, s56, s57")
            e("s_add_u32 s56, s56, 128")
            e("s_add_u32 s56, s58, s56")
            e("s_addc_u32 s57, s59, 0")
            e("v_lshlrev_b32 v101, 2, v7")
            e("v_cmp_gt_u32 vcc, 32, v7")
            e("s_and_saveexec_b64 s[44:45], vcc")
            e("global_store_dword v101, v100, s[56:57]")
            e("s_mov_b64 exec, s[44:45]")
        stamp()
        stamp_store(e, 8, 62)
    S.lab("L_end")
    e("s_endpgm")
    if NPF:
        S.lab("L_prefetch")
        if opt.pf == 2:
            e("s_load_dwordx2 s[4:5], s[0:1], 0")
            e("v_lshrrev_b32 v1, 6, v0")
            e("v_and_b32 v7, 63, v0")
            e("s_and_b32 s16, s2, 7")
            e("v_readfirstlane_b32 s18, v1")
            e(f"s_sub_u32 s17, s2, {0 if opt.pffirst else NWG}")
            e("s_lshr_b32 s17, s17, 3")
            e("s_and_b32 s19, s16, 1")
            e("s_lshl_b32 s19, s19, 2")
            e("s_add_u32 s19, s19, s17")
            e(f"s_mul_i32 s93, s17, {opt.rm}")
            if opt.rx:
                e("s_and_b32 s21, s16, 1")
                e(f"s_mul_i32 s21, s21, {opt.rx}")
                e("s_add_u32 s93, s93, s21")
            e(f"s_and_b32 s93, s93, {RM}")
            e("s_and_b32 s20, s18, 3")
            e("s_lshr_b32 s21, s18, 2")
            e("s_lshl_b32 s20, s20, 6")
            e("v_add_u32 v2, s20, v7")
            e("v_lshlrev_b32 v2, 11, v2")
            e("s_lshl_b32 s22, s19, 19")
            e("s_mov_b32 s26, 522368")
            e("s_mov_b32 s27, 0x20000")
            e(f"s_add_u32 s6, s21, {opt.pf0}")
            e("s_waitcnt lgkmcnt(0)")
            e("s_add_u32 s4, s4, s22")
            e("s_addc_u32 s5, s5, 0")
            e("s_and_b32 s5, s5, 0xffff")
            S.lab("L_pfx")
            e("s_add_u32 s12, s93, s6")
            e(f"s_and_b32 s12, s12, {RM}")
            e(f"s_and_b32 s13, s6, {15 - RM}")
            e("s_or_b32 s12, s12, s13")
            e("s_lshl_b32 s12, s12, 7")
            e("s_add_u32 s24, s4, s12")
            e("s_addc_u32 s25, s5, 0")
            e("buffer_load_dword v8, v2, s[24:27], 0 offen")
            e("s_add_u32 s6, s6, 2")
            e(f"s_cmp_lt_u32 s6, {NT}")
            e("s_cbranch_scc1 L_pfx")
            e("s_endpgm")
        if opt.pf == 1:
            e("s_load_dwordx2 s[6:7], s[0:1], 8")
            e("v_lshrrev_b32 v1, 6, v0")
            e("v_and_b32 v7, 63, v0")
            e("s_and_b32 s16, s2, 7")
            e("v_readfirstlane_b32 s18, v1")
            e(f"s_sub_u32 s17, s2, {0 if opt.pffirst else NWG}")
            e("s_lshr_b32 s17, s17, 3")
            e("s_cmp_ge_u32 s18, 7")
            e("s_cbranch_scc1 L_end")
            e("s_lshr_b32 s20, s16, 1")
            e("s_mul_i32 s20, s20, 7")
            e("s_add_u32 s20, s20, s18")
            e(f"s_mul_i32 s21, s17, {opt.rm}")
            e(f"s_mul_i32 s22, s18, {opt.rn}")
            e("s_add_u32 s21, s21, s22")
            e("s_add_u32 s21, s21, 1")
            e(f"s_and_b32 s21, s21, {RM}")
            e("v_mul_u32_u24 v2, 14336, v7")
            e("s_lshl_b32 s22, s20, 9")
            e("s_mov_b32 s30, 903680")
            e("s_mov_b32 s31, 0x20000")
            e("s_waitcnt lgkmcnt(0)")
            e("s_add_u32 s8, s6, s22")
            e("s_addc_u32 s9, s7, 0")
            e("s_and_b32 s9, s9, 0xffff")
            phases = []
            if opt.pfa: phases.append(("A", 0))
            phases.append(("B", 8))
            for name, add in phases:
                if name == "A":
                    e(f"s_cmp_ge_u32 s18, {opt.pfa}")
                    e("s_cbranch_scc1 L_pfB")
                else:
                    S.lab("L_pfB")
                e(f"s_add_u32 s12, s21, {add}")
                e("s_mul_i32 s12, s12, 917504")
                e("s_add_u32 s28, s8, s12")
                e("s_addc_u32 s29, s9, 0")
                for i in range(4):
                    e(f"buffer_load_dword v{8+i}, v2, s[28:31], 0 offen offset:{i*128}")
            e("s_endpgm")


    if opt.cpf:
        S.lab("L_codeend")
        e("s_endpgm")
    hdr = HEADER + f"; @launch grid=({NWG + NPF},1,1) block=(512,1,1) lds={LDS}\n"
    pre = f""".amdgcn_target "amdgcn-amd-amdhsa--gfx950"
.text
.globl {KNAME}
.p2align 8
.type {KNAME},@function
{KNAME}:
"""
    post = f""".section .rodata,"a"
.p2align 6
.amdhsa_kernel {KNAME}
  .amdhsa_next_free_vgpr 256
  .amdhsa_next_free_sgpr 96
  .amdhsa_accum_offset 256
  .amdhsa_group_segment_fixed_size 0
  .amdhsa_kernarg_size 64
  .amdhsa_user_sgpr_count 2
  .amdhsa_user_sgpr_kernarg_segment_ptr 1
  .amdhsa_system_sgpr_workgroup_id_x 1
.end_amdhsa_kernel
"""
    return hdr + pre + "\n".join(S.resolve()) + "\n" + post

def parse(argv=None):
    ap = argparse.ArgumentParser()
    ap.add_argument("-o", default="k.s")
    ap.add_argument("--stamp", type=int, default=0)
    for f in ("nomfma", "nodq", "nox", "noq", "noc", "noadv", "nowr", "fake16", "cvt"):
        ap.add_argument("--" + f, action="store_true")
    ap.add_argument("--xpos", default="6,7")
    ap.add_argument("--nsl", type=int, default=16)
    ap.add_argument("--qs0", type=int, default=0)
    ap.add_argument("--xph", default="0,1,2,3")
    ap.add_argument("--pf", type=int, default=0)
    ap.add_argument("--pfa", type=int, default=4)
    ap.add_argument("--epo", type=int, default=0)
    ap.add_argument("--pre", default="")
    ap.add_argument("--pf0", type=int, default=1)
    ap.add_argument("--pffirst", type=int, default=0)
    ap.add_argument("--rx", type=int, default=0)
    ap.add_argument("--cpf", type=int, default=0)
    ap.add_argument("--ktab", type=int, default=1)
    ap.add_argument("--ramp", default="1,2")
    ap.add_argument("--pro", default="")
    ap.add_argument("--align", type=int, default=1)
    ap.add_argument("--cprio", type=int, default=3)
    ap.add_argument("--pprio", type=int, default=0)
    ap.add_argument("--rotn", type=int, default=8)
    ap.add_argument("--rm", type=int, default=2)
    ap.add_argument("--rn", type=int, default=1)
    ap.add_argument("--wrpos", type=int, default=0)
    ap.add_argument("--burst", type=int, default=0)
    ap.add_argument("--rpm", type=int, default=1)
    ap.add_argument("--stmod", default="nt")
    ap.add_argument("--qmod", default="")
    ap.add_argument("--xmod", default="")
    opt = ap.parse_args(argv)
    for k in ("stmod", "qmod", "xmod"):
        v = getattr(opt, k)
        if v: setattr(opt, k, " " + v)
    return opt

if __name__ == "__main__":
    opt = parse()
    open(opt.o, "w").write(gen(opt))
```

```python
import sys, argparse, re

KNAME = "standalone__weight_only_int_omniquant__prompt_kernel"
HEADER = """; Kernarg layout for this problem (64 bytes, ptrs only, base s[0:1]):
;
;   waves 0-3 (consumers): 128x64 of the tile each, v_mfma_f32_32x32x16_bf16 (D = W^T x^T), fragments from LDS;
;   waves 4-7 (producers): qw rows -> VGPR, W = bf16((float(q)*s - z*s)*act), ds_write into a 2-stage W ring
; Scales/zeros/act are expanded to f32 tables in LDS once.  One s_barrier per 64-deep K step.
"""
NT = 16

def isize(line):
    s = line.strip()
    if not s or s.startswith(";") or s.endswith(":") or s.startswith("."): return 0
    s = s.split(";")[0].strip()
    op = s.split()[0]
    args = s[len(op):]
    def has_lit():
        for tok in re.split(r"[,\s]+", args):
            tok = tok.strip()
            if not tok: continue
            if re.fullmatch(r"-?(0x[0-9a-fA-F]+|\d+)", tok):
                v = int(tok, 0)
                if v < -16 or v > 64: return True
            elif re.fullmatch(r"L_\w+-\w+", tok): return True
        return False
    if op.startswith(("ds_", "buffer_", "global_", "flat_", "s_load", "s_memtime", "s_memrealtime", "v_mfma", "v_pk_", "v_fma_mix")): return 8
    if op in ("s_waitcnt", "s_barrier", "s_nop", "s_endpgm", "s_setprio", "s_branch", "s_sleep") or op.startswith("s_cbranch"): return 4
    if op.startswith("s_"):
        if op in ("s_movk_i32", "s_addk_i32", "s_mulk_i32"): return 4
        return 8 if has_lit() else 4
    if op.startswith("v_"):
        vop3 = ("v_fma_f32", "v_cvt_pk_bf16_f32", "v_lshl_add_u32", "v_lshl_or_b32", "v_mul_lo_u32", "v_bfe_u32", "v_add3_u32", "v_perm_b32", "v_and_or_b32", "v_readlane_b32", "v_writelane_b32", "v_cmp_gt_u32")
        if op in vop3 or op.endswith("_e64"): return 8
        return 8 if has_lit() else 4
    raise ValueError(line)

class Stream:
    def __init__(self):
        self.L = []
        self.sites = {}
        self.emit = True
        self.maxn = {"vm": 63, "lgkm": 15}
        self.reset()
    def reset(self):
        self.q = {"vm": [], "lgkm": []}
    def e(self, s):
        if self.emit: self.L.append("    " + s)
    def lab(self, s):
        if self.emit: self.L.append(s + ":")
    def c(self, s):
        if self.emit: self.L.append("    ; " + s)
    def d(self, s):
        if self.emit: self.L.append(s)
    def issue(self, ctr, tag): self.q[ctr].append(tag)
    def wait(self, ctr, site, tags):
        q = self.q[ctr]
        last = -1
        for i, t in enumerate(q):
            if t in tags: last = i
        n = self.maxn[ctr] if last < 0 else min(len(q) - 1 - last, self.maxn[ctr])
        key = (ctr, site)
        self.sites[key] = min(self.sites.get(key, 99), n)
        if self.emit: self.L.append(("wait", key))
    def waitall(self, ctr):
        self.q[ctr] = []
        self.e(f"s_waitcnt {'vmcnt' if ctr=='vm' else 'lgkmcnt'}(0)")
    def resolve(self, align_regions=True):
        out = []
        for s in self.L:
            if isinstance(s, tuple):
                ctr, site = s[1]
                n = self.sites[s[1]]
                if n >= self.maxn[ctr]: continue
                out.append(f"    s_waitcnt {'vmcnt' if ctr=='vm' else 'lgkmcnt'}({n})")
            else:
                out.append(s)
        res = []
        off = 0
        on = False
        for s in out:
            t = s.strip()
            if t == "; ALIGN_ON": on = True
            if t == "; ALIGN_OFF": on = False
            if t.startswith(".p2align"):
                a = 1 << int(t.split()[1].rstrip(","))
                off = (off + a - 1) // a * a
                res.append(s); continue
            sz = isize(s)
            if on and sz == 8 and off % 8 == 4:
                res.append("    s_nop 0"); off += 4
            res.append(s); off += sz
        return res

def stamp_store(e, nst, first):
    e("s_waitcnt lgkmcnt(0)")
    e("s_lshl_b32 s56, s2, 11")
    e("s_lshl_b32 s57, s18, 8")
    e("s_add_u32 s56, s56, s57")
    e("s_add_u32 s58, s58, s56")
    e("s_addc_u32 s59, s59, 0")
    e("s_mov_b64 exec, 1")
    e("v_mov_b32 v24, 0")
    for i in range(nst):
        e(f"v_mov_b32 v16, s{first+i}")
        e(f"global_store_dword v24, v16, s[58:59] offset:{4*i}")

def gen(opt):
    NWG = 224
    NX = 3
    NQ = 4
    XRING = 0
    WRING = NX * 32768
    STAB = WRING + 32768
    ZTAB = STAB + 8192
    ATAB = ZTAB + 8192
    LDS = ATAB + 4096 + 512
    EPI = 32768
    S = Stream()
    e = S.e
    nstamp = [0]
    def stamp():
        if not opt.stamp: return
        e("s_memrealtime s[60:61]")
        e("s_waitcnt lgkmcnt(0)")
        e(f"s_mov_b32 s{62+nstamp[0]}, s60")
        nstamp[0] += 1
    RM = opt.rotn - 1
    NPF = 32 if opt.pf else 0
    e(f"s_cmp_ge_u32 s2, {NWG + NPF}")
    e("s_cbranch_scc1 L_end")
    if NPF and opt.pffirst:
        e(f"s_cmp_lt_u32 s2, {NPF}")
        e("s_cbranch_scc1 L_prefetch")
        e(f"s_sub_u32 s2, s2, {NPF}")
    elif NPF:
        e(f"s_cmp_ge_u32 s2, {NWG}")
        e("s_cbranch_scc1 L_prefetch")
    if opt.stamp:
        e("s_memrealtime s[60:61]")
    e("s_load_dwordx8 s[4:11], s[0:1], 0")
    e("s_load_dwordx4 s[12:15], s[0:1], 32")
    if opt.cpf:
        e("s_getpc_b64 s[44:45]")
        S.lab("L_pc")
        e("s_sub_u32 s44, s44, L_pc-" + KNAME)
        e("s_subb_u32 s45, s45, 0")
        e("v_lshlrev_b32 v30, 7, v0")
        e("v_min_u32 v30, L_codeend-" + KNAME + ", v30")
        e("global_load_dword v126, v30, s[44:45]")
    if opt.stamp:
        e("s_load_dwordx2 s[58:59], s[0:1], 56")
    e("v_lshrrev_b32 v1, 6, v0")
    e("s_and_b32 s16, s2, 7")
    e("s_lshr_b32 s17, s2, 3")
    e("v_readfirstlane_b32 s18, v1")
    e("s_and_b32 s19, s16, 1")
    e("s_lshl_b32 s19, s19, 2")
    e("s_and_b32 s20, s17, 3")
    e("s_lshr_b32 s21, s17, 2")
    e(f"s_mul_i32 s93, s20, {opt.rm}")
    e("s_add_u32 s19, s19, s20")
    e("s_lshr_b32 s20, s16, 1")
    e("s_mul_i32 s20, s20, 7")
    e("s_add_u32 s20, s20, s21")
    e(f"s_mul_i32 s21, s21, {opt.rn}")
    e("s_add_u32 s93, s93, s21")
    if opt.rx:
        e("s_and_b32 s21, s16, 1")
        e(f"s_mul_i32 s21, s21, {opt.rx}")
        e("s_add_u32 s93, s93, s21")
    e(f"s_and_b32 s93, s93, {RM}")
    e("v_and_b32 v7, 63, v0")
    e("s_cmp_ge_u32 s18, 4")
    e("s_cbranch_scc1 L_producer")

    S.c("consumer waves")
    e(f"s_setprio {opt.cprio}")
    e("v_lshrrev_b32 v12, 4, v0")
    e("v_and_b32 v13, 15, v0")
    e("v_mul_u32_u24 v14, 7168, v12")
    e("v_lshl_add_u32 v14, v13, 4, v14")
    e("v_lshlrev_b32 v15, 3, v0")
    e("s_lshl_b32 s23, s20, 8")
    e("s_sub_u32 s34, 114688, s23")
    e("s_mov_b32 s35, 0x20000")
    e("s_mov_b32 s38, s34")
    e("s_mov_b32 s39, 0x20000")
    e("s_mov_b32 s42, 2048")
    e("s_mov_b32 s43, 0x20000")
    e("s_waitcnt lgkmcnt(0)")
    e("s_add_u32 s32, s8, s23")
    e("s_addc_u32 s33, s9, 0")
    e("s_and_b32 s33, s33, 0xffff")
    e("s_add_u32 s36, s10, s23")
    e("s_addc_u32 s37, s11, 0")
    e("s_and_b32 s37, s37, 0xffff")
    e("s_mov_b32 s40, s12")
    e("s_and_b32 s41, s13, 0xffff")
    e("buffer_load_dwordx4 v[16:19], v14, s[32:35], 0 offen")
    e("buffer_load_dwordx4 v[20:23], v14, s[36:39], 0 offen")
    e("buffer_load_dwordx2 v[24:25], v15, s[40:43], 0 offen")
    e("v_lshrrev_b32 v8, 3, v7")
    e("s_lshl_b32 s23, s18, 6")
    e("v_add_u32 v8, s23, v8")
    e("v_lshrrev_b32 v9, 5, v7")
    e("v_lshrrev_b32 v10, 4, v7")
    e("v_xor_b32 v10, v9, v10")
    e("v_and_b32 v10, 1, v10")
    e("v_lshlrev_b32 v10, 2, v10")
    e("v_and_b32 v11, 7, v7")
    e("v_xor_b32 v10, v10, v11")
    e("v_lshlrev_b32 v10, 4, v10")
    e("v_lshl_add_u32 v112, v8, 11, v10")
    for jj in range(1, 4):
        e(f"v_xor_b32 v{112+jj}, {jj<<4}, v112")
    for j in range(1, 8):
        e(f"s_mov_b32 s{47+j}, {j*16384 - (j&3)*1024}")
    e("s_lshl_b32 s55, s18, 13")
    e("s_lshl_b32 s23, s19, 19")
    e("s_add_u32 s4, s4, s23")
    e("s_addc_u32 s5, s5, 0")
    e("s_and_b32 s5, s5, 0xffff")
    e("s_mov_b32 s10, 522368")
    e("s_mov_b32 s11, 0x20000")
    e("s_mov_b32 s6, 0")
    e("s_mov_b32 s7, 0")
    def cx_set():
        e("s_add_u32 m0, s55, s7")
        e("s_add_u32 s12, s93, s6")
        e(f"s_and_b32 s12, s12, {RM}")
        if RM != 15:
            e(f"s_and_b32 s13, s6, {15 - RM}")
            e("s_or_b32 s12, s12, s13")
        if opt.noadv: e("s_mov_b32 s12, 0")
        e("s_lshl_b32 s12, s12, 7")
        e("s_add_u32 s8, s4, s12")
        e("s_addc_u32 s9, s5, 0")
        e("s_add_u32 s6, s6, 1")
    def cx_issue(u, j):
        if j == 0: cx_set()
        if j == 4:
            e("s_add_u32 m0, m0, 0x1000")
            e("s_add_u32 s7, s7, 0x8000")
            e(f"s_cmp_eq_u32 s7, {NX*32768}")
            e("s_cselect_b32 s7, 0, s7")
        so = "0" if j == 0 else f"s{47+j}"
        if not opt.nox:
            if opt.dmaprio and u >= 2: e(f"s_setprio {opt.dmaprio}")
            e(f"buffer_load_dwordx4 v{112+(j&3)}, s[8:11], {so} offen offset:{(j&3)*1024}{opt.xmod} lds")
            if opt.dmaprio and u >= 2: e(f"s_setprio {opt.cprio2}")
            S.issue("vm", ("X", u))
    for j in range(8): cx_issue(0, j)
    if opt.stamp:
        e("s_mov_b32 s62, s60")
        nstamp[0] = 1
    e("s_and_b32 s21, s18, 1")
    e("s_lshr_b32 s22, s18, 1")
    e("v_and_b32 v10, 31, v7")
    e("v_lshrrev_b32 v11, 5, v7")
    e("v_lshrrev_b32 v2, 3, v10")
    e("v_lshrrev_b32 v3, 2, v10")
    e("v_lshrrev_b32 v4, 1, v10")
    e("v_xor_b32 v3, v3, v4")
    e("v_and_b32 v3, 1, v3")
    e("v_lshl_or_b32 v2, v3, 2, v2")
    e("v_xor_b32 v2, v2, v11")
    e("v_lshlrev_b32 v2, 4, v2")
    e("v_lshl_add_u32 v9, v10, 7, v2")
    e("s_lshl_b32 s23, s21, 14")
    e("s_lshl_b32 s24, s22, 13")
    e(f"s_add_u32 s24, s24, {WRING}")
    XA = [2, 3, 4, 5]
    WA = [64, 65, 66, 67]
    for ks in range(4):
        e(f"v_xor_b32 v8, {ks*32}, v9")
        e(f"v_add_u32 v{XA[ks]}, s23, v8")
        e(f"v_add_u32 v{WA[ks]}, s24, v8")
    for r in range(128, 256):
        e(f"v_mov_b32 v{r}, 0")
    e("s_mov_b32 s31, 0xffff0000")
    e("s_mov_b32 s30, 0x4b800000")
    e("v_subrev_u32 v74, s93, v12")
    e(f"v_and_b32 v74, {RM}, v74")
    if RM != 15:
        e(f"v_and_b32 v75, {15 - RM}, v12")
        e("v_or_b32 v74, v74, v75")
    e("v_lshlrev_b32 v72, 9, v74")
    e("v_lshl_add_u32 v72, v13, 5, v72")
    e(f"v_add_u32 v72, {STAB}, v72")
    e("v_lshlrev_b32 v73, 8, v74")
    e("v_lshl_add_u32 v73, v13, 4, v73")
    e(f"v_add_u32 v73, {ATAB}, v73")
    e("s_waitcnt vmcnt(%d)" % (0 if opt.nox else 8))
    for d in range(4):
        e(f"v_lshlrev_b32 v{80+2*d}, 16, v{16+d}")
        e(f"v_and_b32 v{81+2*d}, s31, v{16+d}")
        e(f"v_lshlrev_b32 v{88+2*d}, 16, v{20+d}")
        e(f"v_and_b32 v{89+2*d}, s31, v{20+d}")
    for d in range(8):
        e(f"v_mul_f32_e64 v{88+d}, -v{88+d}, v{80+d}")
    if not opt.cvt:
        for d in range(8):
            e(f"v_mul_f32 v{80+d}, s30, v{80+d}")
    for d in range(2):
        e(f"v_lshlrev_b32 v{96+2*d}, 16, v{24+d}")
        e(f"v_and_b32 v{97+2*d}, s31, v{24+d}")
    e("ds_write_b128 v72, v[80:83]")
    e("ds_write_b128 v72, v[84:87] offset:16")
    e("ds_write_b128 v72, v[88:91] offset:8192")
    e("ds_write_b128 v72, v[92:95] offset:8208")
    e("ds_write_b128 v73, v[96:99]")
    e("s_lshl_b32 s25, s19, 8")
    e("s_lshl_b32 s26, s21, 7")
    e("s_add_u32 s25, s25, s26")
    e("s_mul_i32 s25, s25, 7168")
    e("s_lshl_b32 s26, s20, 8")
    e("s_lshl_b32 s27, s22, 7")
    e("s_add_u32 s26, s26, s27")
    e("s_add_u32 s25, s25, s26")
    e("s_add_u32 s40, s14, s25")
    e("s_addc_u32 s41, s15, 0")
    e("s_and_b32 s41, s41, 0xffff")
    e("s_sub_u32 s42, 14680064, s25")
    e("s_mov_b32 s43, 0x20000")
    e("v_and_b32 v12, 7, v10")
    e("v_lshlrev_b32 v13, 1, v11")
    e("v_xor_b32 v12, v12, v13")
    e("v_lshlrev_b32 v12, 4, v12")
    e("v_lshl_add_u32 v12, v10, 7, v12")
    e("s_lshl_b32 s26, s18, 14")
    e(f"s_add_u32 s26, s26, {EPI}")
    e("v_add_u32 v12, s26, v12")
    EW = [72, 73, 74, 75]
    e("s_waitcnt lgkmcnt(0)")
    for tn in range(2):
        for q in range(2):
            e(f"v_xor_b32 v{EW[tn*2+q]}, {(4*tn+q)<<4}, v12")
    e("v_lshrrev_b32 v13, 3, v7")
    e("v_and_b32 v14, 7, v7")
    e("v_xor_b32 v15, v14, v13")
    e("v_lshlrev_b32 v15, 4, v15")
    e("v_lshl_add_u32 v15, v13, 7, v15")
    e("v_add_u32 v76, s26, v15")
    e("v_mul_u32_u24 v77, 7168, v13")
    e("v_lshl_add_u32 v77, v14, 4, v77")
    e("s_mov_b32 s28, 0")
    e("s_mov_b32 s29, 0")
    e("s_mov_b32 s44, 0x8000")
    e("s_mov_b32 s45, 0xffff0000")
    e("s_barrier")
    stamp()
    for j in range(8): cx_issue(1, j)
    F = [dict(x=[16, 20, 24, 28], w=[32, 36]), dict(x=[40, 44, 48, 52], w=[56, 60])]
    def acc(tn, tm):
        b = 128 + (tn * 4 + tm) * 16
        return f"v[{b}:{b+15}]"
    def rd(buf, kind, idx, t, ks):
        if opt.noc: return
        if kind == "x":
            r = F[buf]["x"][idx]
            e(f"ds_read_b128 v[{r}:{r+3}], v{XA[ks]} offset:{idx*4096}")
        else:
            r = F[buf]["w"][idx]; off = idx * 4096 + (t & 1) * 16384
            e(f"ds_read_b128 v[{r}:{r+3}], v{WA[ks]} offset:{off}")
        S.issue("lgkm", (t, ks, kind, idx))
    order = [("w", 0), ("x", 0), ("x", 1), ("x", 2), ("x", 3), ("w", 1)]
    def phase(mf, rdspec, site, tm_major=False, after=None, xd=None):
        if tm_major: mfs = [(tn, tm) for tm in range(4) for tn in range(2)]
        else: mfs = [(tn, tm) for tn in range(2) for tm in range(4)]
        reads = list(order) if rdspec else []
        ri = 0
        for mi, (tn, tm) in enumerate(mfs):
            for _ in range(opt.rpm):
                if ri < len(reads):
                    kind, idx = reads[ri]; ri += 1
                    rd(rdspec[2], kind, idx, rdspec[0], rdspec[1])
            t, ks, buf = mf
            if mi <= 4: S.wait("lgkm", (site, mi), {(t, ks, "w", tn), (t, ks, "x", tm)})
            if not opt.nomfma:
                xr = F[buf]["x"][tm]; wr = F[buf]["w"][tn]
                if opt.fake16:
                    b0 = 128 + (tn * 4 + tm) * 16 + (ks & 1) * 8
                    xr2 = F[buf]["x"][(tm + 1) % 4]
                    e(f"v_mfma_f32_16x16x32_bf16 v[{b0}:{b0+3}], v[{wr}:{wr+3}], v[{xr}:{xr+3}], v[{b0}:{b0+3}]")
                    e(f"v_mfma_f32_16x16x32_bf16 v[{b0+4}:{b0+7}], v[{wr}:{wr+3}], v[{xr2}:{xr2+3}], v[{b0+4}:{b0+7}]")
                else:
                    e(f"v_mfma_f32_32x32x16_bf16 {acc(tn,tm)}, v[{wr}:{wr+3}], v[{xr}:{xr+3}], {acc(tn,tm)}")
            if after and mi == 6: after()
            if xd and mi in xd[1]:
                if xd[2]: cx_issue(xd[0], xd[2].pop(0))
    def advance_stage():
        e("s_cmp_eq_u32 s29, 2")
        e("s_cselect_b32 s46, s45, s44")
        e("s_cselect_b32 s47, -1, s29")
        e("s_add_u32 s29, s47, 1")
        for ks in range(4):
            e(f"v_add_u32 v{XA[ks]}, s46, v{XA[ks]}")
    e("s_waitcnt vmcnt(%d)" % (0 if opt.nox else 8))
    e("s_barrier")
    if opt.stamp:
        e("s_memtime s[88:89]")
        stamp()
        e("s_mov_b32 s86, s88")
    if opt.dmaprio: e(f"s_setprio {opt.cprio2}")
    for kind, idx in order: rd(0, kind, idx, 0, 0)
    _q = list(S.q["vm"])
    n0 = len(opt.xpos.split(",")) if "0" in opt.xph.split(",") else 0
    for jj in range(n0): cx_issue(2, jj)
    S.q["vm"] = _q
    e("s_branch L_cB0")
    S.d(".p2align 6")
    S.lab("L_cloop")
    S.emit = True
    saveL = S.L
    body = {}
    xpos = [int(v) for v in opt.xpos.split(",")]
    for t in range(NT):
        par = t & 1
        tail = t >= NT - 2
        site0 = ("tail", par) if tail else par
        S.L = []
        S.emit = True
        js = list(range(8))
        xd = None if tail else (t + 2, xpos, js)
        xph = [int(v) for v in opt.xph.split(",")]
        def xdp(p): return xd if p in xph else None
        if opt.epo and t == NT - 1:
            body[t] = []
            continue
        if t > 0:
            S.wait("vm", ("X", site0), {("X", t)})
            S.waitall("lgkm")
            e("s_barrier")
            phase((t-1, 3, 1), (t, 0, 0), (site0, 0), xd=xdp(0))
        else:
            saveL_extra = []
        if par == 0 and not tail: S.lab("L_cB0")
        if t == 0:
            for _ in range(n0):
                js.pop(0); S.issue("vm", ("X", 2))
        phase((t, 0, 0), (t, 1, 1), (site0, 1), xd=xdp(1))
        phase((t, 1, 1), (t, 2, 0), (site0, 2), xd=xdp(2))
        phase((t, 2, 0), (t, 3, 1), (site0, 3), after=advance_stage, xd=xdp(3))
        if par == 1 and not tail:
            e("s_add_u32 s28, s28, 1")
            e(f"s_cmp_lt_u32 s28, {NT//2 - 1}")
            e("s_cbranch_scc1 L_cloop")
        if t in (2, 3, NT - 2, NT - 1): body[t] = S.L
    S.L = saveL + body[2] + body[3] + body[NT - 2] + body[NT - 1]
    if not opt.epo:
        S.waitall("lgkm")
        phase((NT-1, 3, 1), None, ("fin", 0), tm_major=True)
        if opt.stamp:
            e("s_memtime s[88:89]")
            nstamp[0] = 20
            stamp()
            e("s_mov_b32 s87, s88")
        S.c("epilogue")
        S.reset()
        T = 80
        R = 16
        e("s_mov_b32 s27, 0")
        sidx = [0]
        def store(it):
            rr = R + (it % 8) * 4
            S.wait("lgkm", ("st", it), {("R", it)})
            e(f"buffer_store_dwordx4 v[{rr}:{rr+3}], v77, s[40:43], s27 offen{opt.stmod}")
            e(f"s_add_u32 s27, s27, 57344")
        if opt.stamp: e("s_nop 7")
        for tm in range(4):
            for tn in range(2):
                b = 128 + (tn * 4 + tm) * 16
                tb = T + ((tm * 2 + tn) % 4) * 8
                if tm == 3 and tn == 0 and not opt.stamp: e("s_nop 3")
                for d in range(8):
                    e(f"v_cvt_pk_bf16_f32 v{tb+d}, v{b+2*d}, v{b+2*d+1}")
                for q in range(2):
                    e(f"ds_write_b128 v{EW[tn*2+q]}, v[{tb+4*q}:{tb+4*q+3}] offset:{tm*4096}")
                    S.issue("lgkm", ("EWr", tm))
                if tm > 0:
                    store((tm - 1) * 4 + tn * 2); store((tm - 1) * 4 + tn * 2 + 1)
            for k in range(4):
                it = tm * 4 + k
                r = R + (it % 8) * 4
                e(f"ds_read_b128 v[{r}:{r+3}], v76 offset:{it*1024}")
                S.issue("lgkm", ("R", it))
        for it in range(12, 16): store(it)
    else:
        S.c("last K step: accumulators finish row block by row block; the epilogue overlaps the MFMAs")
        t = NT - 1
        e("s_waitcnt vmcnt(0)")
        S.waitall("lgkm")
        S.reset()
        e("s_barrier")
        W15 = {(ks, tn): 96 + (ks * 2 + tn) * 4 for ks in range(4) for tn in range(2)}
        XB = [[16 + 4 * ks for ks in range(4)], [40 + 4 * ks for ks in range(4)]]
        SR = [32, 36, 56, 60]
        TC = [80, 88]
        def rw(ks, tn):
            r = W15[(ks, tn)]
            e(f"ds_read_b128 v[{r}:{r+3}], v{WA[ks]} offset:{tn*4096 + (t & 1)*16384}")
            S.issue("lgkm", ("w", ks, tn))
        def rx(tm, ks):
            r = XB[tm & 1][ks]
            e(f"ds_read_b128 v[{r}:{r+3}], v{XA[ks]} offset:{tm*4096}")
            S.issue("lgkm", ("x", tm, ks))
        def cvt(tm, tn, d):
            b_ = 128 + (tn * 4 + tm) * 16
            e(f"v_cvt_pk_bf16_f32 v{TC[tn]+d}, v{b_+2*d}, v{b_+2*d+1}")
        def ewr(tm, tn, q):
            e(f"ds_write_b128 v{EW[tn*2+q]}, v[{TC[tn]+4*q}:{TC[tn]+4*q+3}] offset:{tm*4096}")
            S.issue("lgkm", ("EWr", tm))
        def erd(tm, k):
            it = tm * 4 + k
            e(f"ds_read_b128 v[{SR[k]}:{SR[k]+3}], v76 offset:{it*1024}")
            S.issue("lgkm", ("R", it))
        def est(tm, k):
            it = tm * 4 + k
            S.wait("lgkm", ("st", it), {("R", it)})
            e(f"buffer_store_dwordx4 v[{SR[k]}:{SR[k]+3}], v77, s[40:43], s27 offen{opt.stmod}")
            e(f"s_add_u32 s27, s27, 57344")
        def epi_list(tm):
            fl = []
            for tn in range(2):
                for d in range(8): fl.append(lambda tn=tn, d=d: cvt(tm, tn, d))
                for q in range(2): fl.append(lambda tn=tn, q=q: ewr(tm, tn, q))
            for k in range(4): fl.append(lambda k=k: erd(tm, k))
            return fl
        def run_block(mfmas, early, late):
            n = len(mfmas)
            for i, mf in enumerate(mfmas):
                mf()
                rem = n - i
                k = -(-len(early) // max(1, min(rem, 2))) if i < 2 else len(early)
                for _ in range(min(k, len(early))): early.pop(0)()
                if i >= 2:
                    k = -(-len(late) // rem)
                    for _ in range(min(k, len(late))): late.pop(0)()
            for f in early + late: f()
        e("s_mov_b32 s27, 0")
        mf = []
        for tn in range(2):
            for tm in range(4):
                xr = F[1]["x"][tm]; wr = F[1]["w"][tn]
                mf.append(lambda tn=tn, tm=tm, xr=xr, wr=wr: e(f"v_mfma_f32_32x32x16_bf16 {acc(tn,tm)}, v[{wr}:{wr+3}], v[{xr}:{xr+3}], {acc(tn,tm)}"))
        rds = []
        for ks in range(4):
            rds += [lambda ks=ks: rw(ks, 0), lambda ks=ks: rx(0, ks), lambda ks=ks: rw(ks, 1)]
        for i, m_ in enumerate(mf):
            m_()
            for _ in range(2 if i < 4 else 1):
                if rds: rds.pop(0)()
        for f in rds: f()
        for tm in range(4):
            mf = []
            for ks in range(4):
                for tn in range(2):
                    def m_(ks=ks, tn=tn, tm=tm):
                        S.wait("lgkm", ("ep", tm, ks, tn), {("w", ks, tn), ("x", tm, ks)})
                        xr = XB[tm & 1][ks]; wr = W15[(ks, tn)]
                        e(f"v_mfma_f32_32x32x16_bf16 {acc(tn,tm)}, v[{wr}:{wr+3}], v[{xr}:{xr+3}], {acc(tn,tm)}")
                    mf.append(m_)
            early = []
            if tm + 1 < 4: early += [lambda ks=ks: rx(tm + 1, ks) for ks in range(4)]
            if tm >= 2: early += [lambda k=k: est(tm - 2, k) for k in range(4)]
            late = epi_list(tm - 1) if tm >= 1 else []
            run_block(mf, early, late)
        if opt.stamp:
            e("s_memtime s[88:89]")
            nstamp[0] = 20
            stamp()
            e("s_mov_b32 s87, s88")
        for k in range(4): est(2, k)
        e("s_nop 7")
        for f in epi_list(3): f()
        for k in range(4): est(3, k)
    if opt.stamp:
        stamp()
        e("s_waitcnt vmcnt(0)")
        stamp()
        stamp_store(e, 26, 62)
    e("s_endpgm")

    S.reset()
    S.lab("L_producer")
    nstamp[0] = 0
    e("s_sub_u32 s21, s18, 4")
    if opt.pprio: e(f"s_setprio {opt.pprio}")
    e("v_lshrrev_b32 v9, 5, v7")
    e("v_and_b32 v11, 31, v7")
    e("s_lshl_b32 s22, s21, 1")
    e("v_add_u32 v9, s22, v9")
    e("v_mul_u32_u24 v2, 114688, v9")
    e("v_lshl_add_u32 v2, v11, 4, v2")
    for j in range(1, 8):
        e(f"s_mov_b32 s{43+j}, {j*14336}")
    e("s_mov_b32 s30, 903680")
    e("s_mov_b32 s31, 0x20000")
    e("s_lshl_b32 s22, s20, 9")
    e("s_waitcnt lgkmcnt(0)")
    e("s_mov_b32 s14, 0")
    e("s_mov_b32 s15, 0")
    e("s_add_u32 s8, s6, s22")
    e("s_addc_u32 s9, s7, 0")
    e("s_and_b32 s9, s9, 0xffff")
    def set_k(which):
        cnt = "s14" if which == "q" else "s15"
        e(f"s_add_u32 s12, s93, {cnt}")
        e(f"s_and_b32 s12, s12, {RM}")
        if RM != 15:
            e(f"s_and_b32 s13, {cnt}, {15 - RM}")
            e("s_or_b32 s12, s12, s13")
        if opt.noadv: e("s_mov_b32 s12, 0")
        if which == "q":
            e("s_mul_i32 s12, s12, 917504")
            e("s_add_u32 s28, s8, s12")
            e("s_addc_u32 s29, s9, 0")
        else:
            e("s_lshl_b32 s12, s12, 7")
            e("s_add_u32 s24, s10, s12")
            e("s_addc_u32 s25, s11, 0")
        e(f"s_add_u32 {cnt}, {cnt}, 1")
    def qb(b): return 256 - 32 * NQ + 32 * b
    def issue_x(u, j):
        if j == 0:
            e("s_add_u32 m0, s23, s33")
            set_k("x")
        if j == 4:
            e("s_add_u32 m0, m0, 0x1000")
            e(f"s_add_u32 s33, s33, 0x8000")
            e(f"s_cmp_eq_u32 s33, {NX*32768}")
            e("s_cselect_b32 s33, 0, s33")
        so = "0" if j == 0 else f"s{50+j}"
        if not opt.nox:
            off = (j & 3) * 1024
            e(f"buffer_load_dwordx4 v{80+(j&3)}, s[24:27], {so} offen offset:{off}{opt.xmod} lds")
            S.issue("vm", ("X", u))
    ktab = [False]
    def issue_q(u, j):
        b = u % NQ
        if j == 0:
            if ktab[0]:
                e("s_movrels_b32 s12, s72")
                e(f"s_add_u32 s14, s14, 1")
                e("s_add_u32 s28, s8, s12")
                e("s_addc_u32 s29, s9, 0")
                e("s_mov_b32 m0, s14")
            else:
                set_k("q")
        r = qb(b) + 4 * j
        so = "0" if j == 0 else f"s{43+j}"
        if not opt.noq:
            e(f"buffer_load_dwordx4 v[{r}:{r+3}], v2, s[28:31], {so} offen{opt.qmod}")
            S.issue("vm", ("Q", u))
    for j in range(8): issue_q(0, j)
    if opt.stamp:
        e("s_mov_b32 s62, s60")
        nstamp[0] = 1
    if opt.ktab:
        for u_ in range(NT):
            e(f"s_add_u32 s12, s93, {u_ & RM}")
            e(f"s_and_b32 s12, s12, {RM}")
            if u_ & ~RM: e(f"s_or_b32 s12, s12, {u_ & ~RM}")
            if opt.noadv: e("s_mov_b32 s12, 0")
            e(f"s_mul_i32 s{72+u_}, s12, 917504")
        e("s_mov_b32 s88, 0")
        e("s_mov_b32 m0, s14")
        ktab[0] = True
    e("v_and_b32 v12, 3, v11")
    e("v_bfe_u32 v13, v11, 2, 1")
    e("v_lshrrev_b32 v14, 3, v11")
    e("v_lshlrev_b32 v14, 5, v14")
    e("v_lshl_add_u32 v14, v12, 3, v14")
    e("v_lshl_add_u32 v14, v13, 2, v14")
    e("v_lshl_or_b32 v12, v13, 2, v12")
    e("v_xor_b32 v12, v12, v9")
    e("v_lshlrev_b32 v12, 4, v12")
    e("v_lshl_add_u32 v5, v14, 7, v12")
    e(f"v_add_u32 v5, {WRING}, v5")
    e("v_xor_b32 v6, 64, v5")
    e("v_lshlrev_b32 v3, 4, v11")
    e(f"v_add_u32 v3, {STAB}, v3")
    e("v_lshlrev_b32 v4, 5, v9")
    e(f"v_add_u32 v4, {ATAB}, v4")
    e("s_mov_b32 s92, 0")
    nx0 = 0
    nq0 = 1
    for g in opt.pre.split(","):
        if g == "q":
            for j in range(8): issue_q(nq0, j)
            nq0 += 1
    stamp()
    e("s_barrier")
    for g in opt.pro.split(","):
        if g == "q":
            for j in range(8): issue_q(nq0, j)
            nq0 += 1
    TB = [16, 32]
    tabk = [0]
    def tab_read(u, adv=None):
        r = TB[u & 1]
        k = tabk[0]
        e(f"ds_read_b128 v[{r}:{r+3}], v3 offset:{k*512}");                S.issue("lgkm", ("T", u))
        e(f"ds_read_b128 v[{r+4}:{r+7}], v3 offset:{8192+k*512}");  S.issue("lgkm", ("T", u))
        e(f"ds_read_b128 v[{r+8}:{r+11}], v4 offset:{k*256}");             S.issue("lgkm", ("T", u))
        e(f"ds_read_b128 v[{r+12}:{r+15}], v4 offset:{k*256+16}");  S.issue("lgkm", ("T", u))
        tabk[0] += 1
        if adv:
            e(f"v_add_u32 v3, {tabk[0]*512}, v3")
            e(f"v_add_u32 v4, {tabk[0]*256}, v4")
            tabk[0] = 0
    TT = [48, 56]
    DD = [64, 68, 72, 76]
    tab_read(0)
    S.c("ALIGN_ON") if opt.align else None
    ramp = [int(v) for v in opt.ramp.split(",")]
    NH = len(ramp)
    depth = nq0 + sum(ramp) - NH
    NLOOP = NT - depth
    assert (NLOOP - NH) % 4 == 0 and depth <= NQ - 1, (NLOOP, NH, depth)
    nextq = nq0
    for t in range(-1, NT - 1):
        u = t + 1
        b = u % NQ
        tail = u >= NLOOP
        head = u < NH
        S.emit = head or (u < NH + 4) or tail
        if u == NH:
            S.d(".p2align 6")
            S.lab("L_ploop")
        site = ("tail", u) if tail else (("head", u) if head else b)
        S.c(f"producer iteration u%4={b}" + (" (tail)" if tail else " (head)" if head else ""))
        ng = ramp[u] if head else (0 if tail else 1)
        qlist = list(range(nextq, nextq + ng)); nextq += ng
        tb = TB[u & 1]
        vm = [("q", qq, j) for qq in qlist for j in range(8)]
        def do_vm(n):
            for _ in range(n):
                if vm:
                    k, uu, j = vm.pop(0)
                    (issue_x if k == "x" else issue_q)(uu, j)
        if opt.stamp >= 2: e("s_memtime s[60:61]")
        do_vm(opt.burst)
        if u + 1 < NT:
            adv = (u == NH - 1) or (not head and not tail and (u - NH) % 4 == 3)
            tab_read(u + 1, adv)
        if u == 0: S.wait("lgkm", ("T", site), {("T", u)})
        S.wait("vm", ("Q", site), {("Q", u)})
        par = (u & 1) * 16384
        total = len(vm)
        slot = [0]; issued = [0]
        nsl = opt.nsl
        def slot_vm():
            slot[0] += 1
            k = slot[0] - opt.qs0
            target = 0 if k <= 0 else min(total, (total * k + nsl - 1) // nsl)
            n = target - issued[0]
            if n > 0:
                do_vm(n); issued[0] += n
        def wr(c):
            if opt.nodq or opt.nowr: return
            a = "v5" if c < 2 else "v6"
            e(f"ds_write_b128 {a}, v[{DD[c]}:{DD[c]+3}] offset:{par + c*128}")
            S.issue("lgkm", ("W", u))
        for c in range(4):
            T = TT[c & 1]
            if not opt.nodq:
                for j in range(8):
                    q = qb(b) + 4 * j + c
                    if opt.cvt:
                        e(f"v_cvt_f32_i32{'' if opt.e32 else '_e64'} v{T+j}, v{q}")
                    else:
                        e(f"v_fma_mix_f32 v{T+j}, v{q}, v{tb+c}, v{tb+4+c} op_sel_hi:[1,0,0]")
                    if j == 3: slot_vm()
                if opt.cvt:
                    for j in range(8):
                        e(f"v_fma_f32 v{T+j}, v{T+j}, v{tb+c}, v{tb+4+c}")
            else:
                slot_vm()
            slot_vm()
            if opt.wrpos == 1:
                if c == 2: wr(0)
                if c == 3: wr(2)
            if not opt.nodq:
                for j in range(8):
                    e(f"v_mul_f32{'' if opt.e32 else '_e64'} v{T+j}, v{T+j}, v{tb+8+j}")
            slot_vm()
            if opt.wrpos == 1 and c == 2: wr(1)
            if not opt.nodq:
                for i in range(4):
                    e(f"v_cvt_pk_bf16_f32 v{DD[c]+i}, v{T+2*i}, v{T+2*i+1}")
            if opt.wrpos == 0: wr(c)
            if opt.wrpos == 1 and c == 3: wr(3)
            if opt.wrpos == 2 and c == 3:
                for cc in range(4): wr(cc)
            slot_vm()
        do_vm(99)
        S.wait("lgkm", ("W", site), {("W", u)})
        if opt.stamp >= 2:
            e("s_waitcnt lgkmcnt(0)")
            e("s_mov_b32 m0, s92"); e("s_nop 0"); e("v_writelane_b32 v100, s60, m0")
            e("s_add_u32 s92, s92, 1")
            e("s_mov_b32 m0, s14")
        e("s_barrier")
        if not tail and not head and (u - NH) % 4 == 3:
            e(f"s_cmp_lt_u32 s14, {NT}")
            e("s_cbranch_scc1 L_ploop")
    S.emit = True
    S.c("ALIGN_OFF")
    if opt.stamp:
        if opt.stamp >= 2:
            e("s_memtime s[60:61]")
            e("s_waitcnt lgkmcnt(0)")
            e("s_mov_b32 m0, s92"); e("s_nop 0"); e("v_writelane_b32 v100, s60, m0")
            e("s_lshl_b32 s56, s2, 11")
            e("s_lshl_b32 s57, s18, 8")
            e("s_add_u32 s56, s56, s57")
            e("s_add_u32 s56, s56, 128")
            e("s_add_u32 s56, s58, s56")
            e("s_addc_u32 s57, s59, 0")
            e("v_lshlrev_b32 v101, 2, v7")
            e("v_cmp_gt_u32 vcc, 32, v7")
            e("s_and_saveexec_b64 s[44:45], vcc")
            e("global_store_dword v101, v100, s[56:57]")
            e("s_mov_b64 exec, s[44:45]")
        stamp()
        stamp_store(e, 8, 62)
    S.lab("L_end")
    e("s_endpgm")
    if NPF:
        S.lab("L_prefetch")
        if opt.pf == 2:
            e("s_load_dwordx2 s[4:5], s[0:1], 0")
            e("v_lshrrev_b32 v1, 6, v0")
            e("v_and_b32 v7, 63, v0")
            e("s_and_b32 s16, s2, 7")
            e("v_readfirstlane_b32 s18, v1")
            e(f"s_sub_u32 s17, s2, {0 if opt.pffirst else NWG}")
            e("s_lshr_b32 s17, s17, 3")
            e("s_and_b32 s19, s16, 1")
            e("s_lshl_b32 s19, s19, 2")
            e("s_add_u32 s19, s19, s17")
            e(f"s_mul_i32 s93, s17, {opt.rm}")
            if opt.rx:
                e("s_and_b32 s21, s16, 1")
                e(f"s_mul_i32 s21, s21, {opt.rx}")
                e("s_add_u32 s93, s93, s21")
            e(f"s_and_b32 s93, s93, {RM}")
            e("s_and_b32 s20, s18, 3")
            e("s_lshr_b32 s21, s18, 2")
            e("s_lshl_b32 s20, s20, 6")
            e("v_add_u32 v2, s20, v7")
            e("v_lshlrev_b32 v2, 11, v2")
            e("s_lshl_b32 s22, s19, 19")
            e("s_mov_b32 s26, 522368")
            e("s_mov_b32 s27, 0x20000")
            e(f"s_add_u32 s6, s21, {opt.pf0}")
            e("s_waitcnt lgkmcnt(0)")
            e("s_add_u32 s4, s4, s22")
            e("s_addc_u32 s5, s5, 0")
            e("s_and_b32 s5, s5, 0xffff")
            S.lab("L_pfx")
            e("s_add_u32 s12, s93, s6")
            e(f"s_and_b32 s12, s12, {RM}")
            e(f"s_and_b32 s13, s6, {15 - RM}")
            e("s_or_b32 s12, s12, s13")
            e("s_lshl_b32 s12, s12, 7")
            e("s_add_u32 s24, s4, s12")
            e("s_addc_u32 s25, s5, 0")
            e("buffer_load_dword v8, v2, s[24:27], 0 offen")
            e("s_add_u32 s6, s6, 2")
            e(f"s_cmp_lt_u32 s6, {NT}")
            e("s_cbranch_scc1 L_pfx")
            e("s_endpgm")
        if opt.pf == 1:
            e("s_load_dwordx2 s[6:7], s[0:1], 8")
            e("v_lshrrev_b32 v1, 6, v0")
            e("v_and_b32 v7, 63, v0")
            e("s_and_b32 s16, s2, 7")
            e("v_readfirstlane_b32 s18, v1")
            e(f"s_sub_u32 s17, s2, {0 if opt.pffirst else NWG}")
            e("s_lshr_b32 s17, s17, 3")
            e("s_cmp_ge_u32 s18, 7")
            e("s_cbranch_scc1 L_end")
            e("s_lshr_b32 s20, s16, 1")
            e("s_mul_i32 s20, s20, 7")
            e("s_add_u32 s20, s20, s18")
            e(f"s_mul_i32 s21, s17, {opt.rm}")
            e(f"s_mul_i32 s22, s18, {opt.rn}")
            e("s_add_u32 s21, s21, s22")
            e("s_add_u32 s21, s21, 1")
            e(f"s_and_b32 s21, s21, {RM}")
            e("v_mul_u32_u24 v2, 14336, v7")
            e("s_lshl_b32 s22, s20, 9")
            e("s_mov_b32 s30, 903680")
            e("s_mov_b32 s31, 0x20000")
            e("s_waitcnt lgkmcnt(0)")
            e("s_add_u32 s8, s6, s22")
            e("s_addc_u32 s9, s7, 0")
            e("s_and_b32 s9, s9, 0xffff")
            phases = []
            if opt.pfa: phases.append(("A", 0))
            phases.append(("B", 8))
            for name, add in phases:
                if name == "A":
                    e(f"s_cmp_ge_u32 s18, {opt.pfa}")
                    e("s_cbranch_scc1 L_pfB")
                else:
                    S.lab("L_pfB")
                e(f"s_add_u32 s12, s21, {add}")
                e("s_mul_i32 s12, s12, 917504")
                e("s_add_u32 s28, s8, s12")
                e("s_addc_u32 s29, s9, 0")
                for i in range(4):
                    e(f"buffer_load_dword v{8+i}, v2, s[28:31], 0 offen offset:{i*128}")
            e("s_endpgm")


    if opt.cpf:
        S.lab("L_codeend")
        e("s_endpgm")
    hdr = HEADER + f"; @launch grid=({NWG + NPF},1,1) block=(512,1,1) lds={LDS}\n"
    pre = f""".amdgcn_target "amdgcn-amd-amdhsa--gfx950"
.text
.globl {KNAME}
.p2align 8
.type {KNAME},@function
{KNAME}:
"""
    post = f""".section .rodata,"a"
.p2align 6
.amdhsa_kernel {KNAME}
  .amdhsa_next_free_vgpr 256
  .amdhsa_next_free_sgpr 96
  .amdhsa_accum_offset 256
  .amdhsa_group_segment_fixed_size 0
  .amdhsa_kernarg_size 64
  .amdhsa_user_sgpr_count 2
  .amdhsa_user_sgpr_kernarg_segment_ptr 1
  .amdhsa_system_sgpr_workgroup_id_x 1
.end_amdhsa_kernel
"""
    return hdr + pre + "\n".join(S.resolve()) + "\n" + post

def parse(argv=None):
    ap = argparse.ArgumentParser()
    ap.add_argument("-o", default="k.s")
    ap.add_argument("--stamp", type=int, default=0)
    for f in ("nomfma", "nodq", "nox", "noq", "noc", "noadv", "nowr", "fake16", "cvt"):
        ap.add_argument("--" + f, action="store_true")
    ap.add_argument("--xpos", default="6,7")
    ap.add_argument("--nsl", type=int, default=16)
    ap.add_argument("--qs0", type=int, default=0)
    ap.add_argument("--xph", default="0,1,2,3")
    ap.add_argument("--pf", type=int, default=0)
    ap.add_argument("--pfa", type=int, default=4)
    ap.add_argument("--epo", type=int, default=0)
    ap.add_argument("--pre", default="")
    ap.add_argument("--pf0", type=int, default=1)
    ap.add_argument("--pffirst", type=int, default=0)
    ap.add_argument("--rx", type=int, default=0)
    ap.add_argument("--cpf", type=int, default=0)
    ap.add_argument("--ktab", type=int, default=1)
    ap.add_argument("--dmaprio", type=int, default=0)
    ap.add_argument("--cprio2", type=int, default=0)
    ap.add_argument("--e32", type=int, default=0)
    ap.add_argument("--ramp", default="1,2")
    ap.add_argument("--pro", default="")
    ap.add_argument("--align", type=int, default=1)
    ap.add_argument("--cprio", type=int, default=3)
    ap.add_argument("--pprio", type=int, default=0)
    ap.add_argument("--rotn", type=int, default=8)
    ap.add_argument("--rm", type=int, default=2)
    ap.add_argument("--rn", type=int, default=1)
    ap.add_argument("--wrpos", type=int, default=0)
    ap.add_argument("--burst", type=int, default=0)
    ap.add_argument("--rpm", type=int, default=1)
    ap.add_argument("--stmod", default="nt")
    ap.add_argument("--qmod", default="")
    ap.add_argument("--xmod", default="")
    opt = ap.parse_args(argv)
    for k in ("stmod", "qmod", "xmod"):
        v = getattr(opt, k)
        if v: setattr(opt, k, " " + v)
    return opt

if __name__ == "__main__":
    opt = parse()
    open(opt.o, "w").write(gen(opt))
```
